```python
import torch

def _softmax(x, axis=-1):
    return torch.softmax(x, dim=axis)
def _gelu(x):
    return torch.nn.functional.gelu(x, approximate="tanh")
def _silu(x):
    return torch.nn.functional.silu(x)
def _sigmoid(x):
    return torch.sigmoid(x)
def _layernorm(x, axis=-1, eps=1e-5):
    m = x.mean(dim=axis, keepdim=True)
    v = x.var(dim=axis, keepdim=True, unbiased=False)
    return (x - m) / torch.sqrt(v + eps)
def _scatter_add(tgt, idx, src, axis=0):
    return tgt.clone().index_add_(axis, idx, src)
def _segment_sum(src, seg, n):
    out = torch.zeros((n,) + src.shape[1:], dtype=src.dtype)
    return out.index_add_(0, seg, src)
def _pad(x, pw):
    flat = tuple(v for pair in reversed(pw) for v in pair)
    return torch.nn.functional.pad(x, flat)

kernel_name = 'concat_heads__mha_block_cached__mha_block_cached__near_ridge'

def setup_inputs():

    _w = (lambda a: (lambda t: t.to(torch.bfloat16) if t.is_floating_point() else t)(torch.as_tensor(a)))
    def _A_setup():
        B, Sq, D = 8, 160, 1024
        H, Sk, Dh = 32, 512, 128
        return {
            "x": _w((lambda *s: torch.randn(*s, dtype=torch.bfloat16) * 0.8)(B, Sq, D)),
            "k_cache": _w((lambda *s: torch.randn(*s, dtype=torch.bfloat16) * 0.8)(B, H, Sk, Dh)),
            "v_cache": _w((lambda *s: torch.randn(*s, dtype=torch.bfloat16) * 0.05)(B, H, Sk, Dh)),
            "wq": _w((lambda *s: torch.randn(*s, dtype=torch.bfloat16) * 0.8)(D, H * Dh) * (D ** -0.5)),
            "wo": _w((lambda *s: torch.randn(*s, dtype=torch.bfloat16) * 0.05)(H * Dh, D) * ((H * Dh) ** -0.5)),
        }
    _A_in = _A_setup()

    def _B_setup():
        B, Sq, D = 8, 160, 1024
        H, Sk, Dh = 32, 512, 128
        return {
            "x": _w((lambda *s: torch.randn(*s, dtype=torch.bfloat16) * 0.8)(B, Sq, D)),
            "k_cache": _w((lambda *s: torch.randn(*s, dtype=torch.bfloat16) * 0.8)(B, H, Sk, Dh)),
            "v_cache": _w((lambda *s: torch.randn(*s, dtype=torch.bfloat16) * 0.05)(B, H, Sk, Dh)),
            "wq": _w((lambda *s: torch.randn(*s, dtype=torch.bfloat16) * 0.8)(D, H * Dh) * (D ** -0.5)),
            "wo": _w((lambda *s: torch.randn(*s, dtype=torch.bfloat16) * 0.05)(H * Dh, D) * ((H * Dh) ** -0.5)),
        }
    _B_in = _B_setup()

    return {
        "A_x": _A_in["x"],
        "A_k_cache": _A_in["k_cache"],
        "A_v_cache": _A_in["v_cache"],
        "A_wq": _A_in["wq"],
        "A_wo": _A_in["wo"],
        "B_x": _B_in["x"],
        "B_k_cache": _B_in["k_cache"],
        "B_v_cache": _B_in["v_cache"],
        "B_wq": _B_in["wq"],
        "B_wo": _B_in["wo"],
    }

def reference(A_x, A_k_cache, A_v_cache, A_wq, A_wo, B_x, B_k_cache, B_v_cache, B_wq, B_wo):
    def _A_ref(x, k_cache, v_cache, wq, wo):
        B, Sq, D = x.shape
        H, Dh = 32, 128
        q = (lambda x, *d: x.permute(*d))((x @ wq).reshape(B, Sq, H, Dh), 0, 2, 1, 3)
        scores = torch.einsum("bhqd,bhkd->bhqk", q, k_cache) * (Dh ** -0.5)
        p = _softmax(scores, axis=-1)
        o = torch.einsum("bhqk,bhkd->bhqd", p, v_cache)
        return (lambda x, *d: x.permute(*d))(o, 0, 2, 1, 3).reshape(B, Sq, H * Dh) @ wo

    def _B_ref(x, k_cache, v_cache, wq, wo):
        B, Sq, D = x.shape
        H, Dh = 32, 128
        q = (lambda x, *d: x.permute(*d))((x @ wq).reshape(B, Sq, H, Dh), 0, 2, 1, 3)
        scores = torch.einsum("bhqd,bhkd->bhqk", q, k_cache) * (Dh ** -0.5)
        p = _softmax(scores, axis=-1)
        o = torch.einsum("bhqk,bhkd->bhqd", p, v_cache)
        return (lambda x, *d: x.permute(*d))(o, 0, 2, 1, 3).reshape(B, Sq, H * Dh) @ wo

    a = _A_ref(A_x, A_k_cache, A_v_cache, A_wq, A_wo)
    b = _B_ref(B_x, B_k_cache, B_v_cache, B_wq, B_wo)
    return torch.concatenate([a, b], axis=-1)
```

```python
import re

REG_RE = re.compile(r'\b([vas])(\d+)\b|\b([vas])\[(\d+):(\d+)\]')

def regs_of(tok):
    out = []
    for m in REG_RE.finditer(tok):
        if m.group(1):
            out.append((m.group(1), int(m.group(2))))
        else:
            out += [(m.group(3), i) for i in range(int(m.group(4)), int(m.group(5)) + 1)]
    t = tok.strip()
    if t == 'vcc': out += [('s', 'vcc')]
    if t == 'm0': out += [('s', 'm0')]
    if t == 'exec': out += [('s', 'exec')]
    return out

TRANS = ('v_exp_f32', 'v_log_f32', 'v_rcp_f32', 'v_rsq_f32', 'v_sqrt_f32', 'v_sin_f32', 'v_cos_f32')

class Ins:
    __slots__ = ('text', 'op', 'defs', 'uses', 'kind', 'ops', 'wait_lgkm', 'srcc', 'passes', 'states')
    def __init__(self, text):
        self.text = text
        code = text.split(';')[0].strip()
        self.defs, self.uses, self.srcc = [], [], []
        self.wait_lgkm = None
        self.passes = 0
        self.states = 1
        if not code or code.endswith(':') or code.startswith('.'):
            self.op, self.kind, self.ops, self.states = '', 'label', [], 0
            return
        parts = code.split(None, 1)
        op = self.op = parts[0]
        rest = parts[1] if len(parts) > 1 else ''
        ops = self.ops = [o.strip() for o in rest.split(',')] if rest else []
        R = lambda i: regs_of(ops[i].split()[0]) if i < len(ops) and ops[i] else []
        if op.startswith('v_mfma'):
            self.kind = 'mfma'
            self.defs = R(0); self.uses = R(1) + R(2); self.srcc = R(3)
            self.passes = 8 if '32x32' in op else 4
        elif op.startswith('ds_read'):
            self.kind = 'dsr'; self.defs = R(0); self.uses = R(1)
        elif op.startswith('ds_write'):
            self.kind = 'dsw'; self.uses = R(0) + R(1) + R(2)
        elif op.startswith('buffer_load'):
            if re.search(r'\blds\b', rest):
                self.kind = 'dma'; self.uses = R(0) + R(1) + R(2) + [('s', 'm0')]
            else:
                self.kind = 'vld'; self.defs = R(0); self.uses = R(1) + R(2) + R(3)
        elif op.startswith('buffer_store') or op.startswith('buffer_atomic'):
            self.kind = 'vst'; self.uses = R(0) + R(1) + R(2) + R(3)
        elif op.startswith('buffer_'):
            self.kind = 'vmisc'
        elif op.startswith('v_'):
            self.kind = 'valu'
            if op.startswith('v_permlane') and 'swap' in op:
                self.defs = R(0) + R(1); self.uses = R(0) + R(1)
            elif op.startswith('v_cmp'):
                self.defs = R(0); self.uses = R(1) + R(2)
            else:
                self.defs = R(0)
                for i in range(1, len(ops)): self.uses += R(i)
                if op.startswith('v_fmac') or op.startswith('v_pk_fmac') or op.startswith('v_dot2c'):
                    self.uses += R(0)
        elif op == 's_waitcnt':
            self.kind = 'wait'
            m = re.search(r'lgkmcnt\((\d+)\)', rest)
            if m: self.wait_lgkm = int(m.group(1))
        elif op == 's_nop':
            self.kind = 'nop'; self.states = int(ops[0], 0) + 1
        elif op.startswith('s_load') or op.startswith('s_memtime') or op.startswith('s_memrealtime'):
            self.kind = 'smem'; self.defs = R(0); self.uses = R(1)
        elif op.startswith('s_'):
            self.kind = 'salu'
            if op.startswith('s_cmp') or op.startswith('s_bitcmp') or op.startswith('s_cbranch') or op in ('s_barrier', 's_branch', 's_endpgm', 's_sleep', 's_setprio'):
                for i in range(len(ops)): self.uses += R(i)
            else:
                self.defs = R(0)
                for i in range(1, len(ops)): self.uses += R(i)
        else:
            raise ValueError('unknown op: ' + text)

class Prog:
    def __init__(self):
        self.segs = [('lin', [])]
    def e(self, text):
        for line in text.strip('\n').split('\n'):
            line = line.strip()
            if line: self.segs[-1][1].append(Ins(line))
    def begin_loop(self):
        self.segs.append(('loop', []))
    def end_loop(self):
        self.segs.append(('lin', []))
    def trace(self):
        t = []
        for k, ins in self.segs:
            t += ins * (2 if k == 'loop' else 1)
        return t
    def insert_lgkm_waits(self):
        need = {}
        changed = True
        while changed:
            changed = False
            out = []
            for i in self.trace():
                n = need.get(id(i))
                if n is not None: out = out[len(out) - n:] if n < len(out) else out
                if i.kind == 'wait':
                    if i.wait_lgkm is not None:
                        n = i.wait_lgkm
                        out = out[len(out) - n:] if n < len(out) else out
                    continue
                if i.kind == 'label': continue
                touched = set(i.uses) | set(i.srcc) | set(i.defs)
                last = -1
                for j, d in enumerate(out):
                    if d & touched: last = j
                if last >= 0:
                    n = min(len(out) - 1 - last, 15)
                    if need.get(id(i), 99) > n:
                        need[id(i)] = n; changed = True
                    out = out[len(out) - n:] if n > 0 else []
                if i.kind == 'dsr': out.append(set(i.defs))
                elif i.kind == 'dsw': out.append(set())
                elif i.kind == 'smem': out.append(set())
        for k, (kind, ins) in enumerate(self.segs):
            new = []
            for i in ins:
                if id(i) in need: new.append(Ins(f's_waitcnt lgkmcnt({need[id(i)]})'))
                new.append(i)
            self.segs[k] = (kind, new)
    def hazards(self, fix=True):
        total_pad = 0
        while True:
            t = [i for i in self.trace()]
            viol = None
            for idx, c in enumerate(t):
                if c.kind in ('label', 'nop', 'wait'): continue
                dist = 0
                j = idx - 1
                cu, cd, cc = set(c.uses), set(c.defs), set(c.srcc)
                while j >= 0 and dist < 20:
                    p = t[j]
                    req = 0
                    pd = set(p.defs)
                    if p.kind == 'valu':
                        vd = {r for r in pd if r[0] in 'va'}
                        sd = {r for r in pd if r[0] == 's'}
                        if c.kind == 'mfma' and vd & (cu | cc): req = 2
                        if c.op.startswith('v_permlane') and vd & cu: req = 2
                        if c.op.startswith(('v_readlane', 'v_readfirstlane')) and vd & cu: req = max(req, 1)
                        if p.op.startswith(TRANS) and c.kind == 'valu' and not c.op.startswith(TRANS) and vd & cu: req = max(req, 1)
                        if c.kind in ('dma', 'vld', 'vst') and sd & cu: req = max(req, 5)
                        if c.kind == 'valu' and sd & cu: req = max(req, 2)
                        if c.kind == 'salu' and sd & cu: req = max(req, 2)
                    elif p.kind == 'mfma':
                        big = p.passes == 8
                        if c.kind == 'mfma':
                            if pd & cu: req = 12 if big else 8
                            if pd & cc and pd != cc: req = max(req, 10 if big else 6)
                            if pd & cd and not (pd & cc): req = max(req, 12 if big else 8)
                        elif c.kind in ('valu', 'dsr', 'dsw', 'vld', 'vst', 'dma'):
                            if pd & (cu | cd): req = 12 if big else 8
                            if c.kind == 'valu' and set(p.srcc) & cd: req = max(req, 7 if big else 3)
                    elif p.kind == 'salu':
                        if ('s', 'm0') in pd and c.kind == 'dma': req = 1
                    elif p.kind == 'vst':
                        if ('x4' in p.op or 'x3' in p.op) and c.kind in ('valu', 'dsr', 'vld', 'mfma') and set(regs_of(p.ops[0])) & cd: req = 2
                    if req > dist:
                        viol = (c, req - dist, p); break
                    dist += p.states
                    j -= 1
                if viol: break
            if not viol: return total_pad
            c, n, p = viol
            if not fix: raise RuntimeError(f'hazard: {p.text} -> {c.text} needs {n} more')
            for k, (kind, ins) in enumerate(self.segs):
                for q, i in enumerate(ins):
                    if i is c:
                        ins.insert(q, Ins(f's_nop {n - 1}'))
                        total_pad += n
                        break
                else: continue
                break
    def text(self):
        o = []
        for k, ins in self.segs:
            for i in ins:
                o.append(i.text if i.kind == 'label' else '    ' + i.text)
        return '\n'.join(o) + '\n'

def weave(mfmas, fillers):
    out = list(fillers.get(-1, []))
    for g, m in enumerate(mfmas):
        out.append(m)
        out += fillers.get(g, [])
    return out

def spread(fillers, items, g0, g1):
    n = len(items)
    for k, it in enumerate(items):
        g = g0 + (k * (g1 - g0 + 1)) // n
        fillers.setdefault(g, [])
        fillers[g] += it if isinstance(it, list) else [it]
```

```python
import sys, math
from asmir import Prog, Ins, weave, spread

NAME = "concat_heads__mha_block_cached__mha_block_cached__near_ridge"
KB = 1024

class Cfg:
    fused = False
    stamps = False
    dump = None
    nt_kv = True
    nt_xw = True
    nt_wo = True
    o_store = "sc1"
    o_load = "sc1"
    rot1 = 8
    rot2 = 8
    force_fallback = False

S_W, S_P, S_HH = 4, 5, 6
SRD_X, SRD_WQ, SRD_K, SRD_V, SRD_OW, SRD_WO, SRD_OUT, SRD_DBG, SRD_OR, SRD_TS = 8, 12, 16, 20, 24, 28, 32, 36, 40, 44
S_BLK, S_B, S_HP, S_MT, S_NT = 48, 49, 50, 51, 52
S_STEP, S_PHI, S_SOX, S_SOW = 53, 54, 55, 56
S_WR, S_XR, S_WD, S_XD = 57, 58, 59, 60
S_T0, S_T1, S_T2 = 61, 62, 63
S_PTR = 64
S_XW, S_WW, S_SOK, S_DLT, S_FB, S_KW = 90, 91, 92, 93, 94, 95
S_KR = 57
S_TS = 96

def srd(n): return f"s[{n}:{n+3}]"
def vr(a, n): return f"v[{a}:{a+n-1}]" if n > 1 else f"v{a}"
def ar(a, n): return f"a[{a}:{a+n-1}]" if n > 1 else f"a{a}"

WSLOT = [0, 32*KB, 64*KB]
XSLOT = [136*KB, 96*KB, 116*KB]
LDS_BYTES = 160*KB

WS_O = 0
WS_O_BLK = 80*128*KB
WS_DUMP = 32*KB*KB
WS_TS = 128*KB*KB

QSCALE = (128 ** -0.5) * math.log2(math.e)
import struct
def f32hex(x): return "0x%08x" % struct.unpack("<I", struct.pack("<f", x))[0]

def stamp(p, cfg, idx):
    if not cfg.stamps: return
    p.e(f"""
    s_memrealtime s[{S_TS}:{S_TS+1}]
    s_memtime s[{S_TS+2}:{S_TS+3}]
    s_waitcnt lgkmcnt(0)
    v_writelane_b32 v255, s{S_TS}, {2*idx}
    v_writelane_b32 v255, s{S_TS+2}, {2*idx+1}
    """)

def stamp_flush(p, cfg, which):
    if not cfg.stamps: return
    p.e(f"""
    s_getreg_b32 s{S_TS}, hwreg(HW_REG_XCC_ID)
    s_nop 0
    v_writelane_b32 v255, s{S_TS}, 63
    v_mbcnt_lo_u32_b32 v254, -1, 0
    v_mbcnt_hi_u32_b32 v254, -1, v254
    v_lshlrev_b32 v254, 2, v254
    s_lshl_b32 s{S_TS}, s2, 2
    s_add_u32 s{S_TS}, s{S_TS}, s{S_W}
    s_lshl_b32 s{S_TS}, s{S_TS}, 8
    s_add_u32 s{S_TS}, s{S_TS}, {which*256*4*256}
    s_nop 0
    buffer_store_dword v255, v254, {srd(SRD_TS)}, s{S_TS} offen
    """)

def mk_srd(p, n, lo, hi, off_sgpr, size):
    if off_sgpr is None:
        p.e(f"s_mov_b32 s{n}, s{lo}\ns_mov_b32 s{n+1}, s{hi}")
    else:
        p.e(f"s_add_u32 s{n}, s{lo}, {off_sgpr}\ns_addc_u32 s{n+1}, s{hi}, 0")
    p.e(f"s_mov_b32 s{n+2}, {size}\ns_mov_b32 s{n+3}, 0x20000")

def entry(p, cfg, label_exit):
    p.e(f"""
    s_cmp_ge_u32 s2, 256
    s_cbranch_scc1 {label_exit}
    s_load_dwordx16 s[64:79], s[0:1], 0
    s_load_dwordx8 s[80:87], s[0:1], 64
    s_load_dwordx2 s[88:89], s[0:1], 96
    v_lshrrev_b32 v1, 6, v0
    v_and_b32 v0, 63, v0
    v_readfirstlane_b32 s{S_W}, v1
    s_and_b32 s{S_T0}, s2, 7
    s_lshr_b32 s{S_T1}, s2, 3
    s_lshr_b32 s{S_BLK}, s{S_T0}, 2
    s_and_b32 s{S_P}, s{S_W}, 1
    s_lshr_b32 s{S_HH}, s{S_W}, 1
    s_lshr_b32 s{S_B}, s{S_T1}, 2
    s_and_b32 s{S_HP}, s{S_T0}, 3
    s_lshl_b32 s{S_HP}, s{S_HP}, 2
    s_and_b32 s{S_T2}, s{S_T1}, 3
    s_add_u32 s{S_HP}, s{S_HP}, s{S_T2}
    s_bfe_u32 s{S_MT}, s{S_T0}, 0x10001
    s_lshl_b32 s{S_MT}, s{S_MT}, 3
    s_add_u32 s{S_MT}, s{S_MT}, s{S_B}
    s_and_b32 s{S_NT}, s{S_T0}, 1
    s_lshl_b32 s{S_NT}, s{S_NT}, 2
    s_add_u32 s{S_NT}, s{S_NT}, s{S_T2}
    """)

def select_ptrs(p):
    p.e(f"""
    s_cmp_eq_u32 s{S_BLK}, 0
    s_cselect_b64 s[64:65], s[64:65], s[74:75]
    s_cselect_b64 s[66:67], s[66:67], s[76:77]
    s_cselect_b64 s[68:69], s[68:69], s[78:79]
    s_cselect_b64 s[70:71], s[70:71], s[80:81]
    s_cselect_b64 s[72:73], s[72:73], s[82:83]
    """)


M16 = "v_mfma_f32_16x16x32_bf16"
V_T = 26
ACC = 32
V_DX, V_DW = 192, 197
V_XC, V_WC = 205, 207
V_XL, V_WL = 215, 217
A_FA = 0
A_FB = [104, 64]
def acc(qt, dt): return ACC + 32*qt + 4*dt

def rot(C, step, phi, shifts):
    l = [f"s_add_u32 s{S_T0}, s{step}, s{phi}", f"s_and_b32 s{S_T0}, s{S_T0}, {C-1}",
         f"s_and_b32 s{S_T1}, s{step}, {(~(C-1)) & 0xff}", f"s_or_b32 s{S_T0}, s{S_T0}, s{S_T1}"]
    l += [f"s_lshl_b32 s{r}, s{S_T0}, {sh}" for r, sh in shifts]
    return l + [f"s_add_u32 s{step}, s{step}, 1"]

def gemm_dma(srd_w, srd_x, fl_w, fl_x):
    g = []
    for i in range(8):
        pre = [f"s_add_u32 m0, s{S_WD}, {(i>>2)*4096}"] if i % 4 == 0 else []
        g.append(pre + [f"buffer_load_dwordx4 v{V_DW+i}, {srd(srd_w)}, s{S_SOW} offen offset:{(i&3)*1024}{fl_w} lds"])
    for i in range(5):
        pre = [f"s_add_u32 m0, s{S_XD}, {(i>>2)*4096}"] if i % 4 == 0 else []
        g.append(pre + [f"buffer_load_dwordx4 v{V_DX+i}, {srd(srd_x)}, s{S_SOX} offen offset:{(i&3)*1024}{fl_x} lds"])
    return g
def q_dma(cfg):
    nt = " nt" if cfg.nt_xw else ""
    return gemm_dma(SRD_WQ, SRD_X, nt, nt)

def q_rd_a(dt):
    return [f"ds_read_b64_tr_b16 {ar(A_FA+8*dt+4*kk+2*j,2)}, v{V_WC+dt} offset:{(kk*32+j*4)*512}" for kk in range(2) for j in range(2)]
def q_rd_b(buf):
    return [f"ds_read_b128 {ar(A_FB[buf]+8*qt+4*kk,4)}, v{V_XC+kk} offset:{qt*2048}" for qt in range(5) for kk in range(2)]
def q_group(dt, buf):
    m = []
    for qt in range(5):
        d = vr(acc(qt, dt), 4)
        m += [f"{M16} {d}, {ar(A_FA+8*dt+4*kk,4)}, {ar(A_FB[buf]+8*qt+4*kk,4)}, {d}" for kk in range(2)]
    return m

def slot_rotate(reg, seq):
    lo, hi = min(seq), max(seq)
    st = (hi - lo) // 2
    return [f"s_add_u32 s{reg}, s{reg}, {st}", f"s_cmp_gt_u32 s{reg}, {hi}", f"s_cselect_b32 s{reg}, {lo}, s{reg}"]

def put(f, g, items):
    f.setdefault(g, [])
    f[g] += items if isinstance(items, list) else [items]

def cost(x):
    if x.startswith(('v_exp', 'v_rcp')): return 2
    if x.startswith('buffer_'): return 2
    return 1
def balance(nm, fixed, flex, reach=2):
    load = [sum(cost(x) for x in fixed.get(g, [])) for g in range(nm)]
    for seq in flex:
        prev = 0
        k = 0
        while k < len(seq):
            k2 = k
            while k2 < len(seq) and seq[k2][1:] == seq[k][1:]: k2 += 1
            lo, hi = max(seq[k][1], prev), seq[k][2]
            hi = max(hi, lo)
            n = k2 - k
            for i in range(n):
                it = seq[k+i][0]
                it = it if isinstance(it, list) else [it]
                tgt = lo + int((i + 0.5) * (hi - lo + 1) / n)
                cand = [g for g in range(tgt - reach, tgt + reach + 1) if max(lo, prev) <= g <= hi] or [min(max(prev, lo), hi)]
                g = min(cand, key=lambda x: (load[x], abs(x - tgt), x))
                put(fixed, g, it)
                load[g] += sum(cost(x) for x in it)
                prev = g
            k = k2
    return fixed

def flat(groups):
    out = []
    for g in groups:
        g = g if isinstance(g, list) else [g]
        i = 0
        while i < len(g):
            if g[i].startswith('s_cmp'):
                j = i + 1
                while j < len(g) and g[j].startswith('s_cselect'): j += 1
                out.append(g[i:j]); i = j
            else:
                out.append(g[i]); i += 1
    return out

def phase1a_setup(p, cfg):
    T = V_T
    p.e(f"""
    v_lshrrev_b32 v{T}, 3, v0
    s_mul_i32 s{S_T0}, s{S_W}, 40
    v_add_u32 v{T}, s{S_T0}, v{T}
    v_and_b32 v{T+1}, 7, v0
    """)
    for i in range(5):
        p.e(f"""
        v_add_u32 v{T+2}, {8*i}, v{T}
        v_bfe_u32 v{T+3}, v{T+2}, 1, 3
        v_xor_b32 v{T+3}, v{T+3}, v{T+1}
        v_lshlrev_b32 v{T+3}, 4, v{T+3}
        v_lshl_add_u32 v{V_DX+i}, v{T+2}, 11, v{T+3}
        """)
        if i & 3: p.e(f"v_subrev_u32 v{V_DX+i}, {(i&3)*1024}, v{V_DX+i}")
    p.e(f"""
    v_lshrrev_b32 v{T}, 5, v0
    v_and_b32 v{T+1}, 31, v0
    v_lshlrev_b32 v{T+2}, 1, v{T}
    v_xor_b32 v{T+1}, v{T+1}, v{T+2}
    s_lshl_b32 s{S_T0}, s{S_W}, 4
    v_add_u32 v{T}, s{S_T0}, v{T}
    v_lshlrev_b32 v{T}, 13, v{T}
    """)
    for i in range(8):
        fx = (((2*i) & 3) | ((i >> 2) << 2)) << 1
        p.e(f"""
        v_xor_b32 v{T+2}, {fx}, v{T+1}
        v_lshl_add_u32 v{T+2}, v{T+2}, 4, v{T}
        v_add_u32 v{V_DW+i}, {2*i*8192 - (i&3)*1024}, v{T+2}
        """)

def phase1a_setup2(p, cfg):
    T = V_T
    p.e(f"""
    v_and_b32 v{T}, 15, v0
    s_mul_i32 s{S_T0}, s{S_P}, 80
    v_add_u32 v{T}, s{S_T0}, v{T}
    v_lshlrev_b32 v{T}, 7, v{T}
    v_lshrrev_b32 v{T+1}, 4, v0
    v_bfe_u32 v{T+2}, v0, 1, 3
    v_xor_b32 v{T+2}, v{T+1}, v{T+2}
    v_lshl_add_u32 v{V_XL}, v{T+2}, 4, v{T}
    v_xor_b32 v{V_XL+1}, 64, v{V_XL}
    v_bfe_u32 v{T}, v0, 2, 2
    v_lshl_add_u32 v{T+2}, v{T+1}, 3, v{T}
    v_lshlrev_b32 v{T+2}, 9, v{T+2}
    v_and_b32 v{T+3}, 3, v0
    v_lshl_add_u32 v{T+2}, v{T+3}, 3, v{T+2}
    s_lshl_b32 s{S_T0}, s{S_HH}, 8
    v_add_u32 v{T+2}, s{S_T0}, v{T+2}
    v_and_b32 v{T+1}, 1, v{T+1}
    v_lshl_add_u32 v{T}, v{T+1}, 2, v{T}
    """)
    for dt in range(8):
        p.e(f"v_xor_b32 v{T+1}, {dt}, v{T}\nv_lshl_add_u32 v{V_WL+dt}, v{T+1}, 5, v{T+2}")

def q_period(p, cfg, buf, dma, vm, rotate=True):
    m = []
    for dt in range(1, 8): m += q_group(dt, buf)
    m += q_group(0, buf ^ 1)
    f = {}
    upd = lambda r, l, s: f"v_add_u32 v{r}, s{s}, v{l}"
    put(f, -1, [f"s_waitcnt vmcnt({vm}) lgkmcnt(0)", "s_barrier"])
    seq_a = []
    for dt in range(8):
        lo = 10*dt
        hi = lo + 9 if dt < 7 else lo + 5
        seq_a += [(r, lo, hi) for r in q_rd_a(dt)]
    seq_b = [(r, 0, 58) for r in q_rd_b(buf ^ 1)]
    flex = [seq_a, seq_b]
    if dma: flex.append([(d, 0, 66) for d in flat(dma)])
    f = balance(80, f, flex)
    if rotate:
        tail = [(x, 66, 69) for x in flat([slot_rotate(S_XR, XSLOT) + slot_rotate(S_WR, WSLOT)])]
        tail += [(upd(V_XC+i, V_XL+i, S_XR), 70, 78) for i in range(2)]
        tail += [(upd(V_WC+i, V_WL+i, S_WR), 70, 78) for i in range(7)]
        tail += [(upd(V_WC+7, V_WL+7, S_WR), 77, 79)]
        f = balance(80, f, [tail])
    p.e("\n".join(weave(m, f)))

def phase1a(p, cfg, after_first):
    p.e(f"""
    s_mov_b32 s{S_STEP}, 0
    s_add_u32 s{S_PHI}, s{S_B}, s{S_HP}
    s_add_u32 s{S_PHI}, s{S_PHI}, s{S_HP}
    s_mul_i32 s{S_XW}, s{S_W}, {5*KB}
    s_lshl_b32 s{S_WW}, s{S_W}, 13
    """)
    qrot = lambda: rot(cfg.rot1, S_STEP, S_PHI, [(S_SOX, 7), (S_SOW, 19)])
    for s in range(3):
        l = qrot() + [f"s_add_u32 s{S_XD}, s{S_XW}, {XSLOT[s]}", f"s_add_u32 s{S_WD}, s{S_WW}, {WSLOT[s]}"]
        for g in q_dma(cfg): l += g
        p.e("\n".join(l))
        if s == 0: phase1a_setup2(p, cfg)
        if s == 1: after_first()
    for i in range(2): p.e(f"v_add_u32 v{V_XC+i}, {XSLOT[0]}, v{V_XL+i}")
    for i in range(8): p.e(f"v_add_u32 v{V_WC+i}, {WSLOT[0]}, v{V_WL+i}")
    for i in range(160): p.e(f"v_mov_b32 v{ACC+i}, 0")
    p.e("s_waitcnt vmcnt(26)\ns_barrier")
    stamp(p, cfg, 1)
    rb = q_rd_b(0)
    p.e("\n".join(rb[:2] + q_rd_a(0) + rb[2:]))
    for dt in range(1, 8): p.e("\n".join(q_rd_a(dt)))
    f = {}
    p.e(f"s_mov_b32 s{S_XR}, {XSLOT[1]}\ns_mov_b32 s{S_WR}, {WSLOT[1]}")
    p.e(f"s_add_u32 s{S_XD}, s{S_XW}, {XSLOT[0]}\ns_add_u32 s{S_WD}, s{S_WW}, {WSLOT[0]}")
    spread(f, [f"v_add_u32 v{V_XC+i}, s{S_XR}, v{V_XL+i}" for i in range(2)] +
              [f"v_add_u32 v{V_WC+i}, s{S_WR}, v{V_WL+i}" for i in range(8)], 0, 9)
    p.e("\n".join(weave(q_group(0, 0), f)))
    def dyn_dma():
        d = q_dma(cfg)
        d[0] = qrot() + d[0]
        d[-1] = d[-1] + [f"s_add_u32 s{S_XD}, s{S_XW}, s{S_XR}", f"s_add_u32 s{S_WD}, s{S_WW}, s{S_WR}"]
        return d
    p.begin_loop()
    p.e("Lq_loop:")
    q_period(p, cfg, 0, dyn_dma(), 13)
    q_period(p, cfg, 1, dyn_dma(), 13)
    p.e(f"s_cmp_lt_u32 s{S_STEP}, 15\ns_cbranch_scc1 Lq_loop")
    p.end_loop()
    stamp(p, cfg, 2)
    q_period(p, cfg, 0, dyn_dma(), 13)
    q_period(p, cfg, 1, kv_static(cfg, 0), 13)
    q_period(p, cfg, 0, kv_static(cfg, 1) + kv_static(cfg, 2), 8, rotate=False)

V_DK, V_DV = 1, 5
V_KC, V_VC = 7, 11
V_MG = 19
V_S = [192, 200]
V_S0 = [228, 236, 244, 200, 192]
V_NM = 208
A_Q, A_K, A_V, A_ONE, A_L = 104, [184, 0], [216, 32], 248, 64
RING = [32*KB, 64*KB, 96*KB, 128*KB, 0]
S_SCALE = 74
L_LIMIT = 2.0 ** 24
VOTE = 156*KB

def attn_setup(p, cfg):
    T = V_T
    p.e(f"""
    v_lshrrev_b32 v{T}, 4, v0
    s_lshl_b32 s{S_T0}, s{S_P}, 4
    v_add_u32 v{T+1}, s{S_T0}, v{T}
    v_lshlrev_b32 v{T+1}, 8, v{T+1}
    s_lshl_b32 s{S_T0}, s{S_HH}, 17
    v_add_u32 v{T+1}, s{S_T0}, v{T+1}
    v_and_b32 v{T+2}, 15, v0
    v_xor_b32 v{T+3}, v{T+2}, v{T}
    """)
    for i in range(4):
        p.e(f"v_xor_b32 v{T+4}, {4*i}, v{T+3}\nv_lshl_add_u32 v{V_DK+i}, v{T+4}, 4, v{T+1}")
    p.e(f"""
    v_lshlrev_b32 v{T+4}, 1, v{T}
    v_xor_b32 v{T+4}, v{T+4}, v{T+2}
    v_lshl_add_u32 v{V_DV}, v{T+4}, 4, v{T+1}
    v_xor_b32 v{V_DV+1}, 128, v{V_DV}
    s_lshl_b32 s{S_T0}, s{S_HH}, 13
    s_add_u32 s{S_T0}, s{S_T0}, {RING[0]}
    v_lshlrev_b32 v{T+1}, 8, v{T+2}
    v_add_u32 v{T+1}, s{S_T0}, v{T+1}
    """)
    for kk in range(4):
        p.e(f"v_xor_b32 v{T+4}, {4*kk}, v{T+3}\nv_lshl_add_u32 v{V_KC+kk}, v{T+4}, 4, v{T+1}")
    p.e(f"""
    v_lshrrev_b32 v{T+1}, 2, v0
    v_and_b32 v{T+2}, 7, v{T+1}
    v_lshlrev_b32 v{T+1}, 8, v{T+1}
    v_and_b32 v{T+3}, 3, v0
    v_lshl_add_u32 v{T+1}, v{T+3}, 3, v{T+1}
    s_add_u32 s{S_T0}, s{S_T0}, {16*KB}
    v_add_u32 v{T+1}, s{S_T0}, v{T+1}
    """)
    for dt in range(8):
        p.e(f"v_xor_b32 v{T+4}, {dt}, v{T+2}\nv_lshl_add_u32 v{V_VC+dt}, v{T+4}, 5, v{T+1}")
    p.e(f"s_lshl_b32 s{S_KW}, s{S_W}, 12")
    for t in range(5): p.e(f"v_mov_b32 v{V_MG+t}, 0xff800000")
    p.e(f"v_mov_b32 v{T}, 0x3f803f80")
    for i in range(4): p.e(f"v_accvgpr_write_b32 a{A_ONE+i}, v{T}")

def kv_dma(cfg, pre_k, pre_v):
    nt = " nt" if cfg.nt_kv else ""
    g = []
    for i in range(4):
        g.append((pre_k if i == 0 else []) + [f"buffer_load_dwordx4 v{V_DK+i}, {srd(SRD_K)}, s{S_SOK} offen offset:{i*1024}{nt} lds"])
    for i in range(4):
        g.append((pre_v if i == 0 else []) + [f"buffer_load_dwordx4 v{V_DV+(i&1)}, {srd(SRD_V)}, s{S_SOK} offen offset:{i*1024}{nt} lds"])
    return g
def kv_static(cfg, j):
    return kv_dma(cfg, [f"s_mov_b32 s{S_SOK}, {j*8192}", f"s_add_u32 m0, s{S_KW}, {RING[j % 5]}"],
                  [f"s_add_u32 m0, s{S_KW}, {RING[j % 5] + 16*KB}"])
def kv_dyn(cfg):
    return kv_dma(cfg, [f"s_lshl_b32 s{S_SOK}, s{S_STEP}, 13", f"s_add_u32 s{S_SOK}, s{S_SOK}, {5*8192}",
                        f"s_cmp_gt_u32 s{S_STEP}, 10", f"s_cselect_b32 s{S_SOK}, 0x40000000, s{S_SOK}",
                        f"s_add_u32 s{S_T0}, s{S_KR}, s{S_KW}", f"s_mov_b32 m0, s{S_T0}"],
                  [f"s_add_u32 m0, s{S_T0}, {16*KB}"])

def k_reads(b):
    return [f"ds_read_b128 {ar(A_K[b]+16*kt+4*kk,4)}, v{V_KC+kk} offset:{kt*4096}" for kt in range(2) for kk in range(4)]
def v_reads(b):
    return [f"ds_read_b64_tr_b16 {ar(A_V[b]+4*dt+2*j,2)}, v{V_VC+dt} offset:{j*4096}" for dt in range(8) for j in range(2)]
def qk(qt, s, b, c0=False):
    m = []
    for kt in range(2):
        d = vr(s + 4*kt, 4)
        for kk in range(4):
            c = ('0' if c0 else vr(V_NM + 4*qt, 4)) if kk == 0 else d
            m.append(f"{M16} {d}, {ar(A_K[b]+16*kt+4*kk,4)}, {ar(A_Q+16*qt+4*kk,4)}, {c}")
    return m
def pv(qt, s, b, c0=False):
    m = []
    for dt in range(8):
        d = vr(acc(qt, dt), 4)
        m.append(f"{M16} {d}, {ar(A_V[b]+4*dt,4)}, {vr(s,4)}, {'0' if c0 else d}")
    d = ar(A_L + 4*qt, 4)
    m.append(f"{M16} {d}, {ar(A_ONE,4)}, {vr(s,4)}, {'0' if c0 else d}")
    return m
def sm_ops(s):
    E = lambda i: f"v_exp_f32 v{s+i}, v{s+i}"
    C = lambda j: f"v_cvt_pk_bf16_f32 v{s+j}, v{s+2*j}, v{s+2*j+1}"
    return [(0, E(0)), (2, E(1)), (4, E(2)), (5, C(0)), (6, E(3)), (8, E(4)), (9, C(1)), (10, E(5)),
            (12, E(6)), (13, C(2)), (14, E(7)), (15, C(3))]
def addr_adv():
    head = [f"s_cmp_eq_u32 s{S_DLT+0}, 0"]
    return [f"v_add_u32 v{r}, s{S_DLT}, v{r}" for r in list(range(V_KC, V_KC+4)) + list(range(V_VC, V_VC+8))]
def ring_step():
    return [f"s_add_u32 s{S_KR}, s{S_KR}, {32*KB}", f"s_cmp_eq_u32 s{S_KR}, {160*KB}", f"s_cselect_b32 s{S_KR}, 0, s{S_KR}",
            f"s_mov_b32 s{S_DLT}, {32*KB}", f"s_cmp_eq_u32 s{S_KR}, {128*KB}", f"s_cselect_b32 s{S_DLT}, {(-128*KB) & 0xffffffff}, s{S_DLT}",
            f"s_add_u32 s{S_STEP}, s{S_STEP}, 1"]

def block(p, cfg, odd, last=False, extra=None):
    b = 1 if odd else 0
    sb = lambda qt: V_S[(b + qt) & 1]
    m = qk(0, sb(0), b) + pv(4, V_S[b ^ 1], b ^ 1)
    for qt in range(1, 5): m += qk(qt, sb(qt), b) + pv(qt-1, sb(qt-1), b)
    f = {}
    put(f, -1, [f"s_waitcnt vmcnt({0 if last else 24}) lgkmcnt(0)", "s_barrier"])
    for g, op in sm_ops(V_S[b ^ 1]):
        if g >= 9: put(f, g - 9, op)
    tail = []
    for qt in range(5):
        for g, op in sm_ops(sb(qt)):
            gg = 17*qt + 8 + g
            if gg < 85: put(f, gg, op)
            else: tail.append(op)
    flex = []
    if not last:
        flex.append([(r, 0, 30) for r in k_reads(b ^ 1)])
        flex.append([(r, 17, 70) for r in v_reads(b ^ 1)])
        flex.append([(d, 0, 60) for d in flat(kv_dyn(cfg))])
        f = balance(85, f, flex)
        adv = addr_adv()
        f = balance(85, f, [[(x, 61, 66) for x in flat([ring_step()])] + [(a, 67, 72) for a in adv[:4]] + [(a, 73, 84) for a in adv[4:]]])
    if extra: f = balance(85, f, extra)
    p.e("\n".join(weave(m, f)))
    return tail

def conv(qt, kk):
    a, q = acc(qt, 2*kk), A_Q + 16*qt + 4*kk
    o = [f"v_pk_mul_f32 {vr(a+2*j,2)}, {vr(a+2*j,2)}, s[{S_SCALE}:{S_SCALE+1}]" for j in range(4)]
    o += [f"v_cvt_pk_bf16_f32 v{a+j}, v{a+2*j}, v{a+2*j+1}" for j in range(4)]
    return o, [f"v_permlane32_swap_b32 v{a}, v{a+2}", f"v_permlane32_swap_b32 v{a+1}, v{a+3}"], \
              [f"v_permlane16_swap_b32 v{a}, v{a+2}", f"v_permlane16_swap_b32 v{a+1}, v{a+3}"], \
              [f"v_accvgpr_write_b32 a{q+j}, v{a+j}" for j in range(4)]
def conv_seq(items):
    st = [conv(qt, kk) for qt, kk in items]
    o = []
    n = len(st)
    for i in range(n + 3):
        parts = []
        if i < n: parts.append(st[i][0])
        for k in (1, 2, 3):
            if 0 <= i - k < n: parts.append(st[i-k][k])
        if i < n:
            a = st[i][0]
            rest = [x for pp in parts[1:] for x in pp]
            o += a[:4] + rest[:2] + a[4:] + rest[2:]
        else:
            for pp in parts: o += pp
    return o

def rowmax(qt, s):
    a, b = (V_T, V_T+1) if qt & 1 else (V_T+2, V_T+3)
    nm = V_NM + 4*qt
    o = [f"v_max3_f32 v{a}, v{s}, v{s+1}, v{s+2}", f"v_max3_f32 v{b}, v{s+3}, v{s+4}, v{s+5}",
         f"v_max3_f32 v{a}, v{a}, v{s+6}, v{s+7}", f"v_max3_f32 v{a}, v{a}, v{b}, v{V_MG+qt}",
         f"v_mov_b32 v{b}, v{a}", f"v_permlane16_swap_b32 v{a}, v{b}", f"v_max_f32 v{a}, v{a}, v{b}",
         f"v_mov_b32 v{b}, v{a}", f"v_permlane32_swap_b32 v{a}, v{b}", f"v_max_f32 v{a}, v{a}, v{b}"]
    o += [f"v_sub_f32 v{nm+i}, 0, v{a}" for i in range(4)]
    o += [f"v_pk_add_f32 {vr(s+2*i,2)}, {vr(s+2*i,2)}, {vr(nm,2)}" for i in range(4)]
    return o

def phase1b(p, cfg):
    m = []
    for dt in range(1, 8): m += q_group(dt, 1)
    f = {}
    put(f, -1, ["s_waitcnt lgkmcnt(0)", "s_barrier"])
    put(f, 30, ["s_waitcnt vmcnt(32)", "s_barrier"])
    flex = [[(d, 0, 28) for d in flat(kv_static(cfg, 3) + kv_static(cfg, 4))],
            [(r, 31, 60) for r in k_reads(0) + v_reads(0)]]
    cv = []
    for kk in range(3):
        cv += [(op, 20*kk + 13, min(69, 20*kk + 36)) for op in conv_seq([(qt, kk) for qt in range(5)])]
    flex.append(cv)
    f = balance(70, f, flex)
    p.e("\n".join(weave(m, f)))
    stamp(p, cfg, 3)
    if cfg.dump == 'q':
        p.e("\n".join(conv_seq([(qt, 3) for qt in range(5)])))
        dump_regs(p, cfg, 'a', A_Q, 80)
        return False
    c3 = conv_seq([(qt, 3) for qt in range(5)])
    n0 = max(i for i, op in enumerate(c3) if op.startswith(f"v_accvgpr_write_b32 a{A_Q+15},")) + 1
    p.e("\n".join(c3[:n0]))
    c3 = c3[n0:]
    p.e("Lattn_restart:")
    p.e(f"s_mov_b32 s{S_KR}, {RING[0]}\ns_mov_b32 s{S_STEP}, 0\ns_mov_b32 s{S_DLT}, {32*KB}")
    p.e("s_waitcnt vmcnt(24) lgkmcnt(0)\ns_barrier")
    p.e("\n".join(addr_adv()))
    m = []
    for qt in range(5): m += qk(qt, V_S0[qt], 0, c0=True)
    for qt in range(4): m += pv(qt, V_S0[qt], 0, c0=True)
    f = {}
    pos = 0
    for qt in range(1, 5):
        n1 = max(i for i, op in enumerate(c3) if op.startswith(f"v_accvgpr_write_b32 a{A_Q+16*qt+15},")) + 1
        spread(f, c3[pos:n1], 8*(qt-1), 8*(qt-1) + 6)
        pos = n1
    sm = []
    lo = [12, 30, 42, 52, 62]
    hi = [38, 47, 56, 65, 75]
    for qt in range(5):
        ops = rowmax(qt, V_S0[qt]) + [op for g, op in sm_ops(V_S0[qt]) if qt < 4 or g < 9]
        sm += [(op, lo[qt], hi[qt]) for op in ops]
    zero = [f"v_mov_b32 v{acc(4, 0)+i}, 0" for i in range(32)] + [f"v_accvgpr_write_b32 a{A_L+16+i}, 0" for i in range(4)]
    f = balance(76, f, [sm, [(r, 0, 30) for r in k_reads(1) + v_reads(1)], [(d, 0, 50) for d in flat(kv_dyn(cfg))],
                        [(z, 34, 75) for z in zero]])
    f = balance(76, f, [[(x, 52, 56) for x in flat([ring_step()])] + [(a, 57, 75) for a in addr_adv()]])
    p.e("\n".join(weave(m, f)))
    stamp(p, cfg, 4)
    p.begin_loop()
    p.e("Lattn_loop:")
    block(p, cfg, True)
    block(p, cfg, False)
    p.e(f"s_cmp_lt_u32 s{S_STEP}, 15\ns_cbranch_scc1 Lattn_loop")
    p.end_loop()
    return True

def o_tile(cfg, qt):
    st = f" {cfg.o_store}" if cfg.o_store else ""
    r = V_T + 2*(qt & 1)
    o = [f"v_accvgpr_read_b32 v{r}, a{A_L+4*qt}", f"s_mov_b32 s{S_SOK}, {qt*131072}",
         f"v_max_u32 v{V_T+5}, v{V_T+5}, v{r}", f"v_rcp_f32 v{r}, v{r}"]
    grp = [o]
    for kk in range(4):
        a = acc(qt, 2*kk)
        g = [f"v_pk_mul_f32 {vr(a+2*j,2)}, {vr(a+2*j,2)}, {vr(r,2)} op_sel_hi:[1,0]" for j in range(4)]
        g += [f"v_cvt_pk_bf16_f32 v{a+j}, v{a+2*j}, v{a+2*j+1}" for j in range(4)]
        g += [f"buffer_store_dwordx4 {vr(a,4)}, v{V_OA}, {srd(SRD_OW)}, s{S_SOK} offen offset:{kk*1024}{st}"]
        grp.append(g)
    return [x for g in grp for x in g]

V_OA = 24
def attn_end(p, cfg, prefetch=None):
    pre = [f"s_lshl_b32 s{S_T0}, s{S_HH}, 12", f"s_mul_i32 s{S_T1}, s{S_P}, {5*131072}", f"s_add_u32 s{S_T0}, s{S_T0}, s{S_T1}",
           f"v_lshl_add_u32 v{V_OA}, v0, 4, s{S_T0}", f"v_mov_b32 v{V_T+5}, 0"]
    ex = [[(x, 0, 20) for x in pre]]
    ex.append([(x, 38, 84) for x in o_tile(cfg, 0)] + [(x, 55, 84) for x in o_tile(cfg, 1)])
    if prefetch: ex.append([(d, 0, 60) for d in flat(prefetch)])
    tail = block(p, cfg, True, last=True, extra=ex)
    t2 = o_tile(cfg, 2)
    k = 0
    for op in tail:
        p.e(op); p.e("\n".join(t2[k:k+3])); k += 3
    f = {}
    spread(f, t2[k:] + o_tile(cfg, 3), 0, 8)
    p.e("\n".join(weave(pv(4, V_S[1], 1), f)))
    stamp(p, cfg, 5)
    p.e("\n".join(o_tile(cfg, 4)))
    lim = struct.unpack("<I", struct.pack("<f", L_LIMIT if not cfg.force_fallback else 1.0))[0]
    p.e(f"""
    v_cmp_le_u32 vcc, {hex(lim)}, v{V_T+5}
    s_lshl_b32 s{S_T1}, s{S_W}, 2
    s_add_u32 s{S_T1}, s{S_T1}, {VOTE}
    v_mov_b32 v{V_T+1}, s{S_T1}
    s_cmp_lg_u64 vcc, 0
    s_cselect_b32 s{S_T0}, 1, 0
    v_mov_b32 v{V_T}, s{S_T0}
    ds_write_b32 v{V_T+1}, v{V_T}
    v_mov_b32 v{V_T+1}, {VOTE}
    s_waitcnt vmcnt(0) lgkmcnt(0)
    s_barrier
    ds_read_b128 v[28:31], v{V_T+1}
    v_or3_b32 v28, v28, v29, v30
    v_or_b32 v28, v28, v31
    v_readfirstlane_b32 s{S_T0}, v28
    s_andn2_b32 s{S_T0}, s{S_T0}, s{S_FB}
    s_cmp_lg_u32 s{S_T0}, 0
    s_cbranch_scc1 Lfallback
    """)
    stamp(p, cfg, 6)
def dump_regs(p, cfg, kind, first, n):
    p.e(f"""
    s_waitcnt vmcnt(0) lgkmcnt(0)
    s_lshl_b32 s{S_T0}, s2, 2
    s_add_u32 s{S_T0}, s{S_T0}, s{S_W}
    s_mul_i32 s{S_T0}, s{S_T0}, {n*256}
    s_add_u32 s{S_T0}, s{S_T0}, {WS_DUMP}
    v_lshlrev_b32 v25, 2, v0
    """)
    mk_srd(p, SRD_OR, 88, 89, None, "0x10000000")
    for i in range(n):
        p.e(f"buffer_store_dword {kind}{first+i}, v25, {srd(SRD_OR)}, s{S_T0} offen\ns_add_u32 s{S_T0}, s{S_T0}, 256")

def phase1_srds(p, cfg):
    p.e(f"s_mul_i32 s{S_T0}, s{S_B}, 327680")
    mk_srd(p, SRD_X, 64, 65, f"s{S_T0}", 327680)
    p.e(f"s_lshl_b32 s{S_T0}, s{S_HP}, 9\ns_sub_u32 s{S_T1}, {1024*8192}, s{S_T0}")
    mk_srd(p, SRD_WQ, 70, 71, f"s{S_T0}", f"s{S_T1}")

def phase1_srds2(p, cfg):
    p.e(f"s_lshl_b32 s{S_T0}, s{S_B}, 4\ns_add_u32 s{S_T0}, s{S_T0}, s{S_HP}\ns_lshl_b32 s{S_T0}, s{S_T0}, 18")
    mk_srd(p, SRD_K, 66, 67, f"s{S_T0}", 262144)
    mk_srd(p, SRD_V, 68, 69, f"s{S_T0}", 262144)
    p.e(f"""
    s_mul_i32 s{S_T0}, s{S_BLK}, {WS_O_BLK}
    s_mul_i32 s{S_T1}, s{S_B}, {10*131072}
    s_add_u32 s{S_T0}, s{S_T0}, s{S_T1}
    s_lshl_b32 s{S_T1}, s{S_HP}, 13
    s_add_u32 s{S_T0}, s{S_T0}, s{S_T1}
    s_sub_u32 s{S_T1}, {10*131072}, s{S_T1}
    """)
    mk_srd(p, SRD_OW, 88, 89, f"s{S_T0}", f"s{S_T1}")
    p.e(f"s_mov_b32 s{S_SCALE}, {f32hex(QSCALE)}\ns_mov_b32 s{S_SCALE+1}, {f32hex(QSCALE)}\ns_mov_b32 s{S_FB}, 0")
    if cfg.stamps:
        p.e(f"s_mov_b32 s{S_T0}, {WS_TS}")
        mk_srd(p, SRD_TS, 88, 89, f"s{S_T0}", 1 << 20)

def fallback(p, cfg):
    p.e("Lfallback:\ns_endpgm")

def kernel1(cfg):
    p = Prog()
    entry(p, cfg, "Lexit1")
    stamp(p, cfg, 0)
    phase1a_setup(p, cfg)
    p.e("s_waitcnt lgkmcnt(0)")
    select_ptrs(p)
    phase1_srds(p, cfg)
    phase1a(p, cfg, lambda: (phase1_srds2(p, cfg), attn_setup(p, cfg)))
    if phase1b(p, cfg):
        attn_end(p, cfg)
    stamp_flush(p, cfg, 0)
    p.e("Lexit1:\ns_endpgm")
    fallback(p, cfg)
    return p


P2_FA = 0
P2_FB = [32, 72]
def acc2(mt, v): return ACC + 16*mt + 4*v

def p2_srds(p, cfg):
    p.e(f"s_lshl_b32 s{S_T0}, s{S_NT}, 8\ns_sub_u32 s{S_T1}, {4096*2048}, s{S_T0}")
    mk_srd(p, SRD_WO, 72, 73, f"s{S_T0}", f"s{S_T1}")
    p.e(f"""
    s_mul_i32 s{S_T0}, s{S_BLK}, {WS_O_BLK}
    s_mul_i32 s{S_T1}, s{S_MT}, {5*131072}
    s_add_u32 s{S_T0}, s{S_T0}, s{S_T1}
    """)
    mk_srd(p, SRD_OR, 88, 89, f"s{S_T0}", 5*131072)
    p.e(f"""
    s_mul_i32 s{S_T0}, s{S_MT}, {80*4096}
    s_lshl_b32 s{S_T1}, s{S_BLK}, 11
    s_lshl_b32 s{S_T2}, s{S_NT}, 8
    s_add_u32 s{S_T1}, s{S_T1}, s{S_T2}
    s_add_u32 s{S_T0}, s{S_T0}, s{S_T1}
    s_sub_u32 s{S_T1}, {80*4096}, s{S_T1}
    """)
    mk_srd(p, SRD_OUT, 84, 85, f"s{S_T0}", f"s{S_T1}")

def p2_setup_dma():
    T = V_T
    o = [f"v_lshrrev_b32 v{T}, 4, v0", f"v_and_b32 v{T+1}, 15, v0", f"v_lshlrev_b32 v{T+2}, 1, v{T}",
         f"v_xor_b32 v{T+1}, v{T+1}, v{T+2}", f"s_lshl_b32 s{S_T0}, s{S_W}, 5", f"v_add_u32 v{T}, s{S_T0}, v{T}",
         f"v_lshlrev_b32 v{T}, 11, v{T}", f"v_lshl_add_u32 v{T}, v{T+1}, 4, v{T}", f"v_xor_b32 v{T+1}, 128, v{T}"]
    o += [f"v_add_u32 v{V_DW+i}, {4*i*2048 - (i&3)*1024}, v{T + (i&1)}" for i in range(8)]
    o += [f"v_lshlrev_b32 v{T}, 4, v0", f"s_mul_i32 s{S_T0}, s{S_W}, 5"]
    for i in range(5):
        o += [f"s_add_u32 s{S_T1}, s{S_T0}, {i}", f"s_lshr_b32 s{S_T2}, s{S_T1}, 2", f"s_lshl_b32 s{S_T2}, s{S_T2}, 7",
              f"s_and_b32 s{S_T1}, s{S_T1}, 3", f"s_add_u32 s{S_T1}, s{S_T1}, s{S_T2}", f"s_sub_u32 s{S_T1}, s{S_T1}, {i&3}",
              f"s_lshl_b32 s{S_T1}, s{S_T1}, 10", f"v_add_u32 v{V_DX+i}, s{S_T1}, v{T}"]
    o += [f"s_mov_b32 s{S_STEP}, 0", f"s_add_u32 s{S_PHI}, s{S_MT}, s{S_NT}", f"s_add_u32 s{S_PHI}, s{S_PHI}, s{S_NT}",
          f"s_mul_i32 s{S_XW}, s{S_W}, {5*KB}", f"s_lshl_b32 s{S_WW}, s{S_W}, 13"]
    return o

def p2_setup_rd():
    T = V_T
    o = [f"s_lshl_b32 s{S_T0}, s{S_HH}, 11", f"v_lshl_add_u32 v{V_XL}, v0, 4, s{S_T0}",
         f"v_lshrrev_b32 v{T}, 2, v0", f"v_and_b32 v{T+1}, 7, v{T}", f"s_lshl_b32 s{S_T0}, s{S_HH}, 6",
         f"v_add_u32 v{T}, s{S_T0}, v{T}", f"v_lshlrev_b32 v{T}, 8, v{T}", f"v_and_b32 v{T+2}, 3, v0",
         f"v_lshl_add_u32 v{T}, v{T+2}, 3, v{T}", f"s_lshl_b32 s{S_T0}, s{S_P}, 2", f"s_lshl_b32 s{S_T1}, s{S_HH}, 1",
         f"s_add_u32 s{S_T0}, s{S_T0}, s{S_T1}", f"v_xor_b32 v{T+1}, s{S_T0}, v{T+1}"]
    for v in range(4):
        o += [f"v_xor_b32 v{T+2}, {v}, v{T+1}", f"v_lshl_add_u32 v{V_WL+v}, v{T+2}, 5, v{T}"]
    return o

def p2_dma(cfg):
    return gemm_dma(SRD_WO, SRD_OR, " nt" if cfg.nt_wo else "", f" {cfg.o_load}" if cfg.o_load else "")
def p2_rot(cfg): return rot(cfg.rot2, S_STEP, S_PHI, [(S_SOX, 12), (S_SOW, 18)])
def p2_rd_a(v):
    return [f"ds_read_b64_tr_b16 {ar(P2_FA+8*v+4*kk+2*j,2)}, v{V_WC+v} offset:{(kk*32+j*16)*256}" for kk in range(2) for j in range(2)]
def p2_rd_b(buf):
    return [f"ds_read_b128 {ar(P2_FB[buf]+8*mt+4*kk,4)}, v{V_XC} offset:{mt*4096+kk*1024}" for mt in range(5) for kk in range(2)]
def p2_group(v, buf):
    m = []
    for mt in range(5):
        d = vr(acc2(mt, v), 4)
        m += [f"{M16} {d}, {ar(P2_FA+8*v+4*kk,4)}, {ar(P2_FB[buf]+8*mt+4*kk,4)}, {d}" for kk in range(2)]
    return m

def p2_period(p, cfg, buf, dma, vm, rotate=True):
    m = p2_group(1, buf) + p2_group(2, buf) + p2_group(3, buf) + p2_group(0, buf ^ 1)
    f = {}
    put(f, -1, [f"s_waitcnt vmcnt({vm}) lgkmcnt(0)", "s_barrier"])
    seq_a = []
    for v in range(4):
        seq_a += [(r, 10*v, 10*v + (9 if v < 3 else 4)) for r in p2_rd_a(v)]
    flex = [seq_a, [(r, 0, 22) for r in p2_rd_b(buf ^ 1)]]
    if dma: flex.append([(d, 0, 31) for d in flat(dma)])
    f = balance(40, f, flex, reach=1)
    if rotate:
        upd = lambda r, l, s: f"v_add_u32 v{r}, s{s}, v{l}"
        tail = [(x, 32, 34) for x in flat([slot_rotate(S_XR, XSLOT) + slot_rotate(S_WR, WSLOT)])]
        tail += [(upd(V_XC, V_XL, S_XR), 35, 39)] + [(upd(V_WC+i, V_WL+i, S_WR), 35, 39) for i in range(4)]
        f = balance(40, f, [tail], reach=1)
    p.e("\n".join(weave(m, f)))

def phase2(p, cfg):
    for s in range(3):
        l = p2_rot(cfg) + [f"s_add_u32 s{S_XD}, s{S_XW}, {XSLOT[s]}", f"s_add_u32 s{S_WD}, s{S_WW}, {WSLOT[s]}"]
        for g in p2_dma(cfg): l += g
        if s == 2:
            p.e(f"v_add_u32 v{V_XC}, {XSLOT[0]}, v{V_XL}")
            for i in range(4): p.e(f"v_add_u32 v{V_WC+i}, {WSLOT[0]}, v{V_WL+i}")
            for i in range(80): p.e(f"v_mov_b32 v{ACC+i}, 0")
            p.e("s_waitcnt vmcnt(13)\ns_barrier")
            stamp(p, cfg, 8)
            rb = p2_rd_b(0)
            p.e("\n".join(rb[:2] + p2_rd_a(0) + rb[2:] + p2_rd_a(1) + p2_rd_a(2) + p2_rd_a(3)))
        p.e("\n".join(l))
        if s == 0: p.e("\n".join(p2_setup_rd()))
    p.e(f"s_mov_b32 s{S_XR}, {XSLOT[1]}\ns_mov_b32 s{S_WR}, {WSLOT[1]}")
    p.e(f"s_add_u32 s{S_XD}, s{S_XW}, {XSLOT[0]}\ns_add_u32 s{S_WD}, s{S_WW}, {WSLOT[0]}")
    f = {}
    spread(f, [f"v_add_u32 v{V_XC}, s{S_XR}, v{V_XL}"] + [f"v_add_u32 v{V_WC+i}, s{S_WR}, v{V_WL+i}" for i in range(4)], 0, 9)
    p.e("\n".join(weave(p2_group(0, 0), f)))
    def dyn():
        d = p2_dma(cfg)
        d[0] = p2_rot(cfg) + d[0]
        d[-1] = d[-1] + [f"s_add_u32 s{S_XD}, s{S_XW}, s{S_XR}", f"s_add_u32 s{S_WD}, s{S_WW}, s{S_WR}"]
        return d
    p.begin_loop()
    p.e("Lp2_loop:")
    p2_period(p, cfg, 0, dyn(), 13)
    p2_period(p, cfg, 1, dyn(), 13)
    p.e(f"s_cmp_lt_u32 s{S_STEP}, 31\ns_cbranch_scc1 Lp2_loop")
    p.end_loop()
    p2_period(p, cfg, 0, dyn(), 13)
    p2_period(p, cfg, 1, None, 13)
    p2_period(p, cfg, 0, None, 0, rotate=False)
    T = V_T
    m = p2_group(2, 1) + p2_group(3, 1) + p2_group(1, 1)
    f = {}
    put(f, -1, ["s_waitcnt lgkmcnt(0)", "s_barrier"])
    pre = [f"s_mul_i32 s{S_T0}, s{S_W}, {10*KB}", f"v_lshl_add_u32 v{T}, v0, 4, s{S_T0}",
           f"s_xor_b32 s{S_T0}, s{S_W}, 2", f"s_mul_i32 s{S_T0}, s{S_T0}, {10*KB}", f"v_lshl_add_u32 v{T+1}, v0, 4, s{S_T0}",
           f"v_and_b32 v{T+2}, 15, v0", f"v_lshlrev_b32 v{T+2}, 12, v{T+2}", f"v_bfe_u32 v{T+3}, v0, 4, 1",
           f"v_lshl_add_u32 v{T+2}, v{T+3}, 5, v{T+2}", f"v_lshrrev_b32 v{T+3}, 5, v0", f"v_lshl_add_u32 v{T+2}, v{T+3}, 4, v{T+2}",
           f"s_lshl_b32 s{S_T0}, s{S_P}, 7", f"s_lshl_b32 s{S_T1}, s{S_HH}, 6", f"s_add_u32 s{S_T0}, s{S_T0}, s{S_T1}",
           f"v_add_u32 v{T+2}, s{S_T0}, v{T+2}"]
    wr = lambda v: [f"ds_write_b128 v{T}, {vr(acc2(mt, v),4)} offset:{(2*mt + v - 2)*1024}" for mt in range(5)]
    f = balance(30, f, [[(x, 0, 9) for x in pre], [(x, 14, 22) for x in wr(2)] + [(x, 24, 29) for x in wr(3)]], reach=1)
    p.e("\n".join(weave(m, f)))
    stamp(p, cfg, 9)
    p.e("s_waitcnt lgkmcnt(0)\ns_barrier")
    R = 112
    for mt in range(5):
        for v in range(2): p.e(f"ds_read_b128 {vr(R+8*mt+4*v,4)}, v{T+1} offset:{(2*mt+v)*1024}")
    for mt in range(5):
        a = acc2(mt, 0)
        o = [f"v_pk_add_f32 {vr(a+2*j,2)}, {vr(a+2*j,2)}, {vr(R+8*mt+2*j,2)}" for j in range(4)]
        o += [f"v_cvt_pk_bf16_f32 v{a+j}, v{a+2*j}, v{a+2*j+1}" for j in range(4)]
        o += [f"s_mov_b32 s{S_T0}, {mt*65536}", f"v_permlane16_swap_b32 v{a}, v{a+2}", f"v_permlane16_swap_b32 v{a+1}, v{a+3}",
              f"buffer_store_dwordx4 {vr(a,4)}, v{T+2}, {srd(SRD_OUT)}, s{S_T0} offen"]
        p.e("\n".join(o))
    stamp(p, cfg, 10)

def kernel2(cfg):
    p = Prog()
    entry(p, cfg, "Lexit2")
    stamp(p, cfg, 7)
    p.e("\n".join(p2_setup_dma()))
    p.e("s_waitcnt lgkmcnt(0)")
    select_ptrs(p)
    p2_srds(p, cfg)
    if cfg.stamps:
        p.e(f"s_mov_b32 s{S_T0}, {WS_TS}")
        mk_srd(p, SRD_TS, 88, 89, f"s{S_T0}", 1 << 20)
    phase2(p, cfg)
    stamp_flush(p, cfg, 1)
    p.e("Lexit2:\ns_endpgm")
    return p

def descriptor(name, vgpr=512, accum=256):
    return f""".section .rodata,"a"
.p2align 6
.amdhsa_kernel {name}
  .amdhsa_next_free_vgpr {vgpr}
  .amdhsa_next_free_sgpr 102
  .amdhsa_accum_offset {accum}
  .amdhsa_group_segment_fixed_size 0
  .amdhsa_kernarg_size 104
  .amdhsa_user_sgpr_count 2
  .amdhsa_user_sgpr_kernarg_segment_ptr 1
  .amdhsa_system_sgpr_workgroup_id_x 1
.end_amdhsa_kernel
"""
def kernel_text(name, p):
    p.insert_lgkm_waits()
    pad = p.hazards()
    return f".text\n.globl {name}\n.p2align 8\n.type {name},@function\n{name}:\n" + p.text(), pad

def build(cfg):
    ref = open(f"cdna_kernels/{NAME}.s.ref").read().split("\n")
    head = [l for l in ref if l.startswith(";") and "@launch" not in l and not l.startswith("; Override") and not l.startswith("; grid=")]
    ks = [("attn_kernel", kernel1(cfg))]
    if cfg.dump is None:
        ks.append(("oproj_kernel", kernel2(cfg)))
    out = "\n".join(head) + "\n"
    for n, _ in ks:
        out += f"; @launch kernel={n} grid=(256,1,1) block=(256,1,1) lds={LDS_BYTES}\n"
    out += '.amdgcn_target "amdgcn-amd-amdhsa--gfx950"\n'
    for n, p in ks:
        t, pad = kernel_text(n, p)
        print(f"{n}: {sum(len(i) for _, i in p.segs)} lines, nop pad {pad}", file=sys.stderr)
        out += t
    for n, _ in ks: out += descriptor(n)
    return out

if __name__ == "__main__":
    cfg = Cfg()
    outp = f"cdna_kernels/{NAME}.s"
    for a in sys.argv[1:]:
        if a.startswith("-o="): outp = a[3:]; continue
        k, v = a.split("=")
        setattr(cfg, k, eval(v))
    open(outp, "w").write(build(cfg))
```

```python
from asmir import Ins

def _cls(x):
    if x.startswith(('v_exp', 'v_rcp', 'v_permlane')): return 'T'
    if x.startswith('v_pk_'): return 'P'
    if x.startswith('v_'): return 'V'
    if x.startswith('ds_'): return 'D'
    if x.startswith('buffer_'): return 'M'
    return 'S'

_cache = {}
def _ins(x):
    if x not in _cache: _cache[x] = Ins(x)
    return _cache[x]

def order(items):
    out = []
    for x in items:
        if _cls(x) in 'DM':
            a = _ins(x)
            k = len(out)
            while k > 0:
                y = out[k-1]
                if _cls(y) in 'DM' or y.startswith(('s_waitcnt', 's_barrier', 's_cbranch')) or y.endswith(':'): break
                b = _ins(y)
                if set(b.defs) & (set(a.uses) | set(a.defs)) or set(b.uses) & set(a.defs): break
                k -= 1
            out.insert(k, x)
        else:
            out.append(x)
    return out

def gapcost(items):
    if not items: return 0
    o = [x for x in order(items) if not x.startswith('s_waitcnt vmcnt')]
    c = [_cls(x) for x in o]
    n = len(c)
    if n == 0: return 0
    if all(k == 'S' for k in c): return 4 * max(0, n - 3)
    slots = sum(2 if k == 'T' else 1 for k in c)
    e = 4 * max(0, slots - 2) + 16 * c.count('P')
    if 'M' in c: e = max(e, 4 * (n - 1)) + (4 if c[0] != 'M' else 0)
    seen = False
    for k in c:
        if k in 'VTP': seen = True
        elif k in 'DM' and seen: e += 8
    if c.count('D') >= 2: e += 2
    return e

class Sched:
    def __init__(self, mfmas):
        self.m = mfmas
        self.f = {}
    def put(self, g, items):
        self.f.setdefault(g, [])
        self.f[g] += items if isinstance(items, list) else [items]
    def add(self, seq, reach=3):
        prev, k = 0, 0
        while k < len(seq):
            k2 = k
            while k2 < len(seq) and seq[k2][1:] == seq[k][1:]: k2 += 1
            lo, hi = max(seq[k][1], prev), min(seq[k][2], len(self.m) - 1)
            hi = max(hi, lo)
            n = k2 - k
            for i in range(n):
                it = seq[k+i][0]
                it = it if isinstance(it, list) else [it]
                tgt = lo + (i + 0.5) * (hi - lo + 1) / n - 0.5
                cand = [g for g in range(int(tgt) - reach, int(tgt) + reach + 2) if max(lo, prev) <= g <= hi] or [min(max(prev, lo), hi)]
                def key(g):
                    cur = self.f.get(g, [])
                    return gapcost(cur + it) - gapcost(cur) + 0.6 * abs(g - tgt)
                g = min(cand, key=key)
                self.put(g, it)
                prev = g
            k = k2
        return self
    def lines(self):
        out = list(self.f.get(-1, []))
        for g, m in enumerate(self.m):
            out.append(m)
            out += order(self.f.get(g, []))
        return out
    def est(self):
        return 16 * len(self.m) + sum(gapcost(v) for g, v in self.f.items() if g >= 0)

def flat(groups):
    out = []
    for g in groups:
        g = g if isinstance(g, list) else [g]
        i = 0
        while i < len(g):
            if isinstance(g[i], list):
                out.append(g[i]); i += 1
            elif g[i].startswith(('s_cmp', 's_bitcmp')):
                j = i + 1
                while j < len(g) and not isinstance(g[j], list) and g[j].startswith('s_cselect'): j += 1
                out.append(g[i:j]); i = j
            else:
                out.append(g[i]); i += 1
    return out
def win(items, lo, hi): return [(x, lo, hi) for x in items]
```

```python
import sys, math, struct
from asmir import Prog, Ins
from sched import Sched, flat, win

NAME = "concat_heads__mha_block_cached__mha_block_cached__near_ridge"
KB = 1024
M16 = "v_mfma_f32_16x16x32_bf16"

class Cfg:
    fused = True
    stamps = False
    f_kv = ""
    f_xw = ""
    f_wo = ""
    o_store = " sc1"
    o_load = " sc1"
    rot1 = 2
    rot2 = 4
    force_fallback = False
    poll_sleep = 4
    verbose = True

S_W, S_P, S_HH = 4, 5, 6
SRD_X, SRD_WQ, SRD_K, SRD_V, SRD_OW, SRD_WO, SRD_OUT, SRD_DBG, SRD_OR, SRD_TS = 8, 12, 16, 20, 24, 28, 32, 36, 40, 44
S_BLK, S_B, S_HP, S_KH, S_NT = 48, 49, 50, 51, 52
S_STEP, S_PHI, S_SOX, S_SOW = 53, 54, 55, 56
S_WR, S_XR, S_WD, S_XD = 57, 58, 59, 60
S_T0, S_T1, S_T2 = 61, 62, 63
S_SCALE = 74
SRD_EX = 76
S_NB, S_KD, S_SPIN, S_W0 = 80, 81, 82, 83
SRD_FL = 8
S_XW, S_WW, S_SOK, S_FB, S_KW = 90, 91, 92, 94, 95
S_TS = 96

def srd(n): return f"s[{n}:{n+3}]"
def vr(a, n): return f"v[{a}:{a+n-1}]" if n > 1 else f"v{a}"
def ar(a, n): return f"a[{a}:{a+n-1}]" if n > 1 else f"a{a}"
def f32bits(x): return struct.unpack("<I", struct.pack("<f", x))[0]

WSLOT = [32*KB, 64*KB, 0]
XSLOT = [136*KB, 96*KB, 116*KB]
RING = [64*KB, 96*KB, 0, 32*KB]
QSCR = 128*KB
VOTE = 159*KB
P2W, P2X = 0, 64*KB
LDS_BYTES = 160*KB

WS_O_BLK = 80*128*KB
WS_EX = 32*KB*KB
WS_FL = 48*KB*KB
WS_TS = 128*KB*KB
QSCALE = (128 ** -0.5) * math.log2(math.e)
L_LIMIT = 2.0 ** 24
SPIN_MAX = 1 << 15

STAMPS = []
def stamp(p, cfg, name):
    if not cfg.stamps: return
    idx = len(STAMPS); STAMPS.append(name)
    p.e(f"""
    s_memrealtime s[{S_TS}:{S_TS+1}]
    s_memtime s[{S_TS+2}:{S_TS+3}]
    s_waitcnt lgkmcnt(0)
    v_writelane_b32 v255, s{S_TS}, {2*idx}
    v_writelane_b32 v255, s{S_TS+2}, {2*idx+1}
    """)
def stamp_flush(p, cfg, which):
    if not cfg.stamps: return
    p.e(f"s_mov_b32 s{S_T0}, {WS_TS}")
    mk_srd(p, SRD_TS, 88, 89, f"s{S_T0}", 1 << 20)
    p.e(f"""
    s_getreg_b32 s{S_TS}, hwreg(HW_REG_XCC_ID)
    s_nop 0
    v_writelane_b32 v255, s{S_TS}, 63
    v_lshlrev_b32 v254, 2, v0
    s_lshl_b32 s{S_TS}, s2, 2
    s_add_u32 s{S_TS}, s{S_TS}, s{S_W}
    s_lshl_b32 s{S_TS}, s{S_TS}, 8
    s_add_u32 s{S_TS}, s{S_TS}, {which*256*4*256}
    s_nop 0
    buffer_store_dword v255, v254, {srd(SRD_TS)}, s{S_TS} offen
    """)

def srd_lines(n, lo, hi, off, size):
    l = [f"s_mov_b32 s{n}, s{lo}", f"s_mov_b32 s{n+1}, s{hi}"] if off is None else \
        [[f"s_add_u32 s{n}, s{lo}, {off}", f"s_addc_u32 s{n+1}, s{hi}, 0"]]
    return l + [f"s_mov_b32 s{n+2}, {size}", f"s_mov_b32 s{n+3}, 0x20000"]
def un(l):
    o = []
    for x in l: o += un(x) if isinstance(x, list) else [x]
    return o
def emit(p, l): p.e("\n".join(un(l)))
def mk_srd(p, n, lo, hi, off, size): emit(p, srd_lines(n, lo, hi, off, size))
def run(p, cfg, name, s):
    if cfg.verbose: print(f"   {name}: {len(s.m)} mfma, estimate {s.est()} cycles", file=sys.stderr)
    emit(p, s.lines())

def entry(p, cfg, label_exit):
    p.e(f"""
    s_cmp_ge_u32 s2, 256
    s_cbranch_scc1 {label_exit}
    s_load_dwordx16 s[64:79], s[0:1], 0
    s_load_dwordx8 s[80:87], s[0:1], 64
    s_load_dwordx2 s[88:89], s[0:1], 96
    v_lshrrev_b32 v1, 6, v0
    v_and_b32 v0, 63, v0
    v_readfirstlane_b32 s{S_W}, v1
    s_bfe_u32 s{S_BLK}, s2, 0x10002
    s_lshr_b32 s{S_B}, s2, 5
    s_and_b32 s{S_HP}, s2, 3
    s_lshl_b32 s{S_HP}, s{S_HP}, 2
    s_bfe_u32 s{S_T2}, s2, 0x20003
    s_add_u32 s{S_HP}, s{S_HP}, s{S_T2}
    s_and_b32 s{S_P}, s{S_W}, 1
    s_lshr_b32 s{S_HH}, s{S_W}, 1
    s_lshr_b32 s{S_KH}, s{S_HP}, 3
    s_and_b32 s{S_NT}, s{S_HP}, 7
    """)
def select_ptrs(p):
    p.e(f"s_cmp_eq_u32 s{S_BLK}, 0")
    for i in range(5): p.e(f"s_cselect_b64 s[{64+2*i}:{65+2*i}], s[{64+2*i}:{65+2*i}], s[{74+2*i}:{75+2*i}]")

V_T = 26
ACC = 32
def acc(qt, dt): return ACC + 32*qt + 4*dt

def rot(C, shifts):
    if C == 1:
        l = []; src = S_STEP
    else:
        l = [f"s_add_u32 s{S_T0}, s{S_STEP}, s{S_PHI}", f"s_xor_b32 s{S_T0}, s{S_T0}, s{S_STEP}",
             f"s_and_b32 s{S_T0}, s{S_T0}, {C-1}", f"s_xor_b32 s{S_T0}, s{S_T0}, s{S_STEP}"]
        src = S_T0
    l += [f"s_lshl_b32 s{r}, s{src}, {sh}" for r, sh in shifts]
    return l + [f"s_add_u32 s{S_STEP}, s{S_STEP}, 1"]

def dma_run(vo, n, sr, so, m0, fl):
    g = []
    for i in range(n):
        if i % 4 == 0: g.append(m0(i >> 2))
        g.append(f"buffer_load_dwordx4 v{vo+i}, {srd(sr)}, s{so} offen offset:{(i&3)*1024}{fl} lds")
    return g

V_DX, V_DW = 192, 197
V_XC, V_WC = 205, 207
V_XL, V_WL = 215, 217
A_FA = 0
A_FB = [104, 64]

def q_dma(cfg):
    return dma_run(V_DW, 8, SRD_WQ, S_SOW, lambda k: f"s_add_u32 m0, s{S_WD}, {k*4096}", cfg.f_xw) + \
           dma_run(V_DX, 5, SRD_X, S_SOX, lambda k: f"s_add_u32 m0, s{S_XD}, {k*4096}", cfg.f_xw)
def q_rot(cfg): return rot(cfg.rot1, [(S_SOX, 7), (S_SOW, 19)])
def q_rd_a(dt):
    return [f"ds_read_b64_tr_b16 {ar(A_FA+8*dt+4*kk+2*j,2)}, v{V_WC+dt} offset:{(kk*32+j*4)*512}" for kk in range(2) for j in range(2)]
def q_rd_b(buf):
    return [f"ds_read_b128 {ar(A_FB[buf]+8*qt+4*kk,4)}, v{V_XC+kk} offset:{qt*2048}" for qt in range(5) for kk in range(2)]
def q_group(dt, buf):
    m = []
    for qt in range(5):
        d = vr(acc(qt, dt), 4)
        m += [f"{M16} {d}, {ar(A_FA+8*dt+4*kk,4)}, {ar(A_FB[buf]+8*qt+4*kk,4)}, {d}" for kk in range(2)]
    return m
def slot_rotate(reg, seq):
    lo, hi = min(seq), max(seq)
    return [f"s_add_u32 s{reg}, s{reg}, {(hi - lo)//2}", f"s_cmp_gt_u32 s{reg}, {hi}", f"s_cselect_b32 s{reg}, {lo}, s{reg}"]

def q_setup_dma(p):
    T = V_T
    p.e(f"""
    v_lshrrev_b32 v{T}, 3, v0
    v_lshrrev_b32 v{T+1}, 4, v0
    v_xor_b32 v{T+1}, v{T+1}, v0
    v_and_b32 v{T+1}, 7, v{T+1}
    v_lshlrev_b32 v{T}, 11, v{T}
    v_lshl_add_u32 v{T}, v{T+1}, 4, v{T}
    s_mul_i32 s{S_T0}, s{S_W}, {40*2048}
    s_lshl_b32 s{S_T1}, s{S_P}, 6
    v_xor_b32 v{T}, s{S_T1}, v{T}
    v_add_u32 v{V_DX}, s{S_T0}, v{T}
    v_xor_b32 v{T+1}, 64, v{V_DX}
    """)
    for i in range(1, 5): p.e(f"v_add_u32 v{V_DX+i}, {8*i*2048 - (i&3)*1024}, v{T+1 if i & 1 else V_DX}")
    p.e(f"""
    v_lshrrev_b32 v{T}, 5, v0
    v_and_b32 v{T+1}, 31, v0
    v_lshlrev_b32 v{T+2}, 1, v{T}
    v_xor_b32 v{T+1}, v{T+1}, v{T+2}
    v_lshlrev_b32 v{T}, 13, v{T}
    v_lshl_add_u32 v{T}, v{T+1}, 4, v{T}
    s_lshl_b32 s{S_T0}, s{S_W}, 17
    v_add_u32 v{V_DW}, s{S_T0}, v{T}
    v_xor_b32 v{T}, 64, v{V_DW}
    v_xor_b32 v{T+1}, 128, v{V_DW}
    v_xor_b32 v{T+2}, 192, v{V_DW}
    """)
    for i in range(1, 8):
        src = [V_DW, T, T+1, T+2][(i & 1) + 2*(i >> 2)]
        p.e(f"v_add_u32 v{V_DW+i}, {2*i*8192 - (i&3)*1024}, v{src}")

def q_setup_rd(p):
    T = V_T
    p.e(f"""
    v_and_b32 v{T}, 15, v0
    s_mul_i32 s{S_T0}, s{S_P}, 80
    v_add_u32 v{T}, s{S_T0}, v{T}
    v_lshlrev_b32 v{T}, 7, v{T}
    v_lshrrev_b32 v{T+1}, 4, v0
    v_bfe_u32 v{T+2}, v0, 1, 3
    v_xor_b32 v{T+2}, v{T+1}, v{T+2}
    v_lshl_add_u32 v{V_XL}, v{T+2}, 4, v{T}
    v_xor_b32 v{V_XL+1}, 64, v{V_XL}
    v_bfe_u32 v{T}, v0, 2, 2
    v_lshl_add_u32 v{T+2}, v{T+1}, 3, v{T}
    v_lshlrev_b32 v{T+2}, 9, v{T+2}
    v_and_b32 v{T+3}, 3, v0
    v_lshl_add_u32 v{T+2}, v{T+3}, 3, v{T+2}
    s_lshl_b32 s{S_T0}, s{S_HH}, 8
    v_add_u32 v{T+2}, s{S_T0}, v{T+2}
    v_and_b32 v{T+1}, 1, v{T+1}
    v_lshl_add_u32 v{T}, v{T+1}, 2, v{T}
    v_lshl_add_u32 v{V_WL}, v{T}, 5, v{T+2}
    """)
    for dt in range(1, 8): p.e(f"v_xor_b32 v{V_WL+dt}, {dt*32}, v{V_WL}")

def q_period(p, cfg, buf, dma, vm, rotate=True, name="q period"):
    m = []
    for dt in range(1, 8): m += q_group(dt, buf)
    s = Sched(m + q_group(0, buf ^ 1))
    s.put(-1, [f"s_waitcnt vmcnt({vm}) lgkmcnt(0)", "s_barrier"])
    if dma: s.add(win(flat([dma]), 0, 66))
    seq = []
    for dt in range(8): seq += win(q_rd_a(dt), 10*dt, 10*dt + (9 if dt < 7 else 5))
    s.add(seq).add(win(q_rd_b(buf ^ 1), 0, 60))
    if rotate:
        upd = lambda r, l, sr: f"v_add_u32 v{r}, s{sr}, v{l}"
        t = win(flat([slot_rotate(S_XR, XSLOT) + slot_rotate(S_WR, WSLOT)]), 65, 69)
        t += win([upd(V_XC+i, V_XL+i, S_XR) for i in range(2)] + [upd(V_WC+i, V_WL+i, S_WR) for i in range(7)], 70, 78)
        t += win([upd(V_WC+7, V_WL+7, S_WR)], 77, 79)
        s.add(t, reach=2)
    run(p, cfg, name, s)

def phase1a(p, cfg):
    p.e(f"""
    s_mov_b32 s{S_STEP}, 0
    s_lshl1_add_u32 s{S_PHI}, s{S_HP}, s{S_B}
    s_mul_i32 s{S_XW}, s{S_W}, {5*KB}
    s_lshl_b32 s{S_WW}, s{S_W}, 13
    """)
    slot = lambda s: q_rot(cfg) + [f"s_add_u32 s{S_XD}, s{S_XW}, {XSLOT[s]}", f"s_add_u32 s{S_WD}, s{S_WW}, {WSLOT[s]}"] + q_dma(cfg)
    emit(p, slot(0))
    q_setup_rd(p)
    for i in range(2): p.e(f"v_add_u32 v{V_XC+i}, {XSLOT[0]}, v{V_XL+i}")
    for i in range(8): p.e(f"v_add_u32 v{V_WC+i}, {WSLOT[0]}, v{V_WL+i}")
    for i in range(80): p.e(f"v_mov_b64 {vr(ACC+2*i,2)}, 0")
    phase1_srds2(p, cfg)
    attn_setup(p, cfg)
    emit(p, slot(1))
    p.e("s_waitcnt vmcnt(13)\ns_barrier")
    stamp(p, cfg, "q_first")
    rb = q_rd_b(0)
    rd = rb[:2] + q_rd_a(0) + rb[2:]
    for dt in range(1, 8): rd += q_rd_a(dt)
    emit(p, rd + slot(2))
    if cfg.fused: flag_clear(p, cfg)
    p.e(f"s_mov_b32 s{S_XR}, {XSLOT[1]}\ns_mov_b32 s{S_WR}, {WSLOT[1]}")
    p.e(f"s_add_u32 s{S_XD}, s{S_XW}, {XSLOT[0]}\ns_add_u32 s{S_WD}, s{S_WW}, {WSLOT[0]}")
    s = Sched(q_group(0, 0))
    s.add(win([f"v_add_u32 v{V_XC+i}, s{S_XR}, v{V_XL+i}" for i in range(2)] +
              [f"v_add_u32 v{V_WC+i}, s{S_WR}, v{V_WL+i}" for i in range(8)], 0, 9))
    run(p, cfg, "q group 0", s)
    dyn = lambda: q_rot(cfg) + q_dma(cfg) + [f"s_add_u32 s{S_XD}, s{S_XW}, s{S_XR}", f"s_add_u32 s{S_WD}, s{S_WW}, s{S_WR}"]
    p.begin_loop()
    p.e("Lq_loop:")
    q_period(p, cfg, 0, dyn(), 13)
    q_period(p, cfg, 1, dyn(), 13)
    p.e(f"s_cmp_lt_u32 s{S_STEP}, 15\ns_cbranch_scc1 Lq_loop")
    p.end_loop()
    stamp(p, cfg, "q_loop_end")
    if cfg.fused: flag_cleared(p, cfg)
    q_period(p, cfg, 0, dyn(), 13)
    q_period(p, cfg, 1, kv_static(cfg, 0), 13, name="q p13")
    q_period(p, cfg, 0, kv_static(cfg, 1) + kv_static(cfg, 2), 8, rotate=False, name="q p14")
    stamp(p, cfg, "q_p14")

V_DK, V_DV = 1, 5
V_KC, V_VC = 7, 11
V_MG = 19
V_OA = 24
V_QW, V_QR = 252, 253
V_S = [192, 200]
V_S0 = [228, 236, 244, 200, 192]
V_NM = 208
A_Q, A_K, A_V, A_ONE, A_L = 104, [184, 0], [216, 32], 248, 64

def attn_setup(p, cfg):
    T = V_T
    p.e(f"""
    v_lshrrev_b32 v{T}, 4, v0
    s_lshl_b32 s{S_T0}, s{S_P}, 12
    s_lshl_b32 s{S_T1}, s{S_HH}, 17
    s_add_u32 s{S_T0}, s{S_T0}, s{S_T1}
    v_lshl_add_u32 v{T+1}, v{T}, 8, s{S_T0}
    v_and_b32 v{T+2}, 15, v0
    v_xor_b32 v{T+3}, v{T+2}, v{T}
    v_lshl_add_u32 v{V_DK}, v{T+3}, 4, v{T+1}
    v_xor_b32 v{V_DK+1}, 64, v{V_DK}
    v_xor_b32 v{V_DK+2}, 128, v{V_DK}
    v_xor_b32 v{V_DK+3}, 192, v{V_DK}
    v_lshlrev_b32 v{T+4}, 1, v{T}
    v_xor_b32 v{T+4}, v{T+4}, v{T+2}
    v_lshl_add_u32 v{V_DV}, v{T+4}, 4, v{T+1}
    v_xor_b32 v{V_DV+1}, 128, v{V_DV}
    s_lshl_b32 s{S_T0}, s{S_HH}, 13
    s_add_u32 s{S_T0}, s{S_T0}, {RING[0]}
    v_lshl_add_u32 v{T+1}, v{T+2}, 8, s{S_T0}
    v_lshl_add_u32 v{V_KC}, v{T+3}, 4, v{T+1}
    v_xor_b32 v{V_KC+1}, 64, v{V_KC}
    v_xor_b32 v{V_KC+2}, 128, v{V_KC}
    v_xor_b32 v{V_KC+3}, 192, v{V_KC}
    v_lshrrev_b32 v{T+1}, 2, v0
    v_and_b32 v{T+3}, 7, v{T+1}
    s_add_u32 s{S_T0}, s{S_T0}, {16*KB}
    v_lshl_add_u32 v{T+1}, v{T+1}, 8, s{S_T0}
    v_and_b32 v{T+4}, 3, v0
    v_lshl_add_u32 v{T+1}, v{T+4}, 3, v{T+1}
    v_lshl_add_u32 v{V_VC}, v{T+3}, 5, v{T+1}
    """)
    for dt in range(1, 8): p.e(f"v_xor_b32 v{V_VC+dt}, {dt*32}, v{V_VC}")
    p.e(f"""
    s_lshl_b32 s{S_KW}, s{S_W}, 12
    s_lshl_b32 s{S_T0}, s{S_W}, 13
    s_add_u32 s{S_T0}, s{S_T0}, {QSCR}
    v_lshl_add_u32 v{V_QR}, v0, 4, s{S_T0}
    v_lshrrev_b32 v{T+1}, 5, v0
    v_lshl_add_u32 v{T+1}, v{T+1}, 4, v{T+2}
    v_lshl_add_u32 v{T+1}, v{T+1}, 4, s{S_T0}
    v_and_b32 v{T}, 1, v{T}
    v_lshl_add_u32 v{V_QW}, v{T}, 3, v{T+1}
    s_lshl_b32 s{S_T0}, s{S_HH}, 12
    s_mul_i32 s{S_T1}, s{S_P}, {5*131072}
    s_add_u32 s{S_T0}, s{S_T0}, s{S_T1}
    v_lshl_add_u32 v{V_OA}, v0, 4, s{S_T0}
    v_mov_b32 v{T}, 0x3f803f80
    """)
    for t in range(5): p.e(f"v_mov_b32 v{V_MG+t}, 0xff800000")
    for i in range(4): p.e(f"v_accvgpr_write_b32 a{A_ONE+i}, v{T}")

def kv_dma(cfg, pre, m0k, m0v):
    g = pre + [m0k]
    g += [f"buffer_load_dwordx4 v{V_DK+i}, {srd(SRD_K)}, s{S_SOK} offen offset:{i*1024}{cfg.f_kv} lds" for i in range(4)]
    g += [m0v]
    g += [f"buffer_load_dwordx4 v{V_DV+(i&1)}, {srd(SRD_V)}, s{S_SOK} offen offset:{i*1024}{cfg.f_kv} lds" for i in range(4)]
    return g
def kv_static(cfg, j):
    return kv_dma(cfg, [f"s_mov_b32 s{S_SOK}, {j*8192}"], f"s_add_u32 m0, s{S_KW}, {RING[j % 4]}", f"s_add_u32 m0, s{S_KW}, {RING[j % 4] + 16*KB}")
def kv_dyn(cfg, odd):
    g = kv_dma(cfg, [f"s_cmp_lt_u32 s{S_NB}, 131072", f"s_cselect_b32 s{S_SOK}, s{S_NB}, 0x40000000"],
               f"s_add_u32 m0, s{S_KD}, {odd*32*KB}", f"s_add_u32 m0, s{S_KD}, {odd*32*KB + 16*KB}")
    g += [f"s_addk_i32 s{S_NB}, 0x2000"]
    if odd: g += [f"s_xor_b32 s{S_KD}, s{S_KD}, 0x10000"]
    return g
def k_reads(b):
    return [f"ds_read_b128 {ar(A_K[b]+16*kt+4*kk,4)}, v{V_KC+kk} offset:{b*32*KB + kt*4096}" for kt in range(2) for kk in range(4)]
def v_reads(b):
    return [f"ds_read_b64_tr_b16 {ar(A_V[b]+4*dt+2*j,2)}, v{V_VC+dt} offset:{b*32*KB + j*4096}" for dt in range(8) for j in range(2)]
def addr_flip(op="v_xor_b32", c="0x10000"):
    return [f"{op} v{r}, {c}, v{r}" for r in range(V_KC, V_KC + 12)]
def qk(qt, s, b, c0=False):
    m = []
    for kt in range(2):
        d = vr(s + 4*kt, 4)
        for kk in range(4):
            c = ('0' if c0 else vr(V_NM + 4*qt, 4)) if kk == 0 else d
            m.append(f"{M16} {d}, {ar(A_K[b]+16*kt+4*kk,4)}, {ar(A_Q+16*qt+4*kk,4)}, {c}")
    return m
def pv(qt, s, b, c0=False):
    m = []
    for dt in range(8):
        d = vr(acc(qt, dt), 4)
        m.append(f"{M16} {d}, {ar(A_V[b]+4*dt,4)}, {vr(s,4)}, {'0' if c0 else d}")
    d = ar(A_L + 4*qt, 4)
    m.append(f"{M16} {d}, {ar(A_ONE,4)}, {vr(s,4)}, {'0' if c0 else d}")
    return m
def sm_ops(s):
    E = lambda i: f"v_exp_f32 v{s+i}, v{s+i}"
    C = lambda j: f"v_cvt_pk_bf16_f32 v{s+j}, v{s+2*j}, v{s+2*j+1}"
    return [(0, E(0)), (2, E(1)), (4, E(2)), (5, C(0)), (6, E(3)), (8, E(4)), (9, C(1)), (10, E(5)),
            (12, E(6)), (13, C(2)), (14, E(7)), (15, C(3))]

def block(p, cfg, b, last=False, extra=None):
    sb = lambda qt: V_S[(b + qt) & 1]
    m = qk(0, sb(0), b) + pv(4, V_S[b ^ 1], b ^ 1)
    for qt in range(1, 5): m += qk(qt, sb(qt), b) + pv(qt-1, sb(qt-1), b)
    s = Sched(m)
    s.put(-1, [f"s_waitcnt vmcnt({0 if last else 16}) lgkmcnt(0)", "s_barrier"])
    for g, op in sm_ops(V_S[b ^ 1]):
        if g >= 9: s.put(g - 9, op)
    tail = []
    for qt in range(5):
        for g, op in sm_ops(sb(qt)):
            gg = 17*qt + 8 + g
            if gg < 85: s.put(gg, op)
            else: tail.append(op)
    if not last:
        s.add(win(flat([kv_dyn(cfg, b)]), 0, 80), reach=4)
        s.add(win(k_reads(b ^ 1), 0, 40)).add(win(v_reads(b ^ 1), 17, 72))
        if b == 0:
            fl = addr_flip()
            s.add(win(fl[:4], 44, 70) + win(fl[4:], 74, 84), reach=4)
    for e in extra or []: s.add(e, reach=4)
    run(p, cfg, f"block parity {b}{' last' if last else ''}", s)
    return tail

def conv(qt, kk):
    a = acc(qt, 2*kk)
    o = []
    for h in range(2):
        o += [f"v_mul_f32 v{a+4*h+j}, s{S_SCALE}, v{a+4*h+j}" for j in range(4)]
        o += [f"v_cvt_pk_bf16_f32 v{a+4*h+j}, v{a+4*h+2*j}, v{a+4*h+2*j+1}" for j in range(2)]
        o += [f"ds_write_b64 v{V_QW}, {vr(a+4*h,2)} offset:{qt*1024 + h*512}"]
    return o + [f"ds_read_b128 {ar(A_Q+16*qt+4*kk,4)}, v{V_QR} offset:{qt*1024}"]

def rowmax(qt, s):
    a, b = (V_T, V_T+1) if qt & 1 else (V_T+2, V_T+3)
    nm = V_NM + 4*qt
    o = [f"v_max3_f32 v{a}, v{s}, v{s+1}, v{s+2}", f"v_max3_f32 v{b}, v{s+3}, v{s+4}, v{s+5}",
         f"v_max3_f32 v{a}, v{a}, v{s+6}, v{s+7}", f"v_max3_f32 v{a}, v{a}, v{b}, v{V_MG+qt}",
         f"v_mov_b32 v{b}, v{a}", f"v_permlane16_swap_b32 v{a}, v{b}", f"v_max_f32 v{a}, v{a}, v{b}",
         f"v_mov_b32 v{b}, v{a}", f"v_permlane32_swap_b32 v{a}, v{b}", f"v_max_f32 v{a}, v{a}, v{b}"]
    o += [f"v_sub_f32 v{s+i}, v{s+i}, v{a}" for i in range(8)]
    o += [f"v_sub_f32 v{nm+i}, 0, v{a}" for i in range(4)]
    return o

def block0(p, cfg, with_conv):
    p.e(f"s_mov_b32 s{S_NB}, {4*8192}\ns_add_u32 s{S_KD}, s{S_KW}, {RING[0]}")
    p.e("s_waitcnt vmcnt(16) lgkmcnt(0)\ns_barrier")
    m = []
    for qt in range(5): m += qk(qt, V_S0[qt], 0, c0=True)
    for qt in range(4): m += pv(qt, V_S0[qt], 0, c0=True)
    s = Sched(m)
    if with_conv:
        for qt in range(1, 5): s.add(win(conv(qt, 3), max(0, 8*qt - 12), 8*qt - 3), reach=1)
    s.add(win(flat([kv_dyn(cfg, 0)]), 0, 60))
    lo, hi = [10, 29, 41, 51, 61], [37, 46, 55, 64, 75]
    sm = []
    for qt in range(5):
        sm += win(rowmax(qt, V_S0[qt]) + [op for g, op in sm_ops(V_S0[qt]) if qt < 4 or g < 9], lo[qt], hi[qt])
    s.add(sm, reach=1)
    s.add(win(k_reads(1) + v_reads(1), 0, 60))
    s.add(win([f"v_mov_b64 {vr(acc(4,0)+2*i,2)}, 0" for i in range(16)] + [f"v_accvgpr_write_b32 a{A_L+16+i}, 0" for i in range(4)], 33, 75))
    s.add(win(addr_flip(), 62, 75))
    run(p, cfg, "block 0", s)

def phase1b(p, cfg):
    m = []
    for dt in range(1, 8): m += q_group(dt, 1)
    s = Sched(m)
    s.put(-1, ["s_waitcnt lgkmcnt(0)", "s_barrier"])
    s.put(30, ["s_waitcnt vmcnt(24)", "s_barrier"])
    s.add(win(flat([kv_static(cfg, 3)]), 0, 12))
    cv = []
    for kk in range(3):
        cv += win(un([conv(qt, kk) for qt in range(5)]), 20*kk + 12, min(69, 20*kk + 34))
    s.add(cv, reach=1)
    s.add(win(k_reads(0) + v_reads(0), 31, 66))
    run(p, cfg, "q last", s)
    emit(p, conv(0, 3))
    stamp(p, cfg, "q_end")
    block0(p, cfg, True)
    stamp(p, cfg, "blk0_end")
    p.begin_loop()
    p.e("Lattn_loop:")
    block(p, cfg, 1)
    block(p, cfg, 0)
    p.e(f"s_cmp_lt_u32 s{S_NB}, {19*8192}\ns_cbranch_scc1 Lattn_loop")
    p.end_loop()

def o_tile(cfg, qt, packed=False):
    r = V_T + 2*(qt & 1)
    o = [f"v_accvgpr_read_b32 v{r}, a{A_L+4*qt}", f"s_mov_b32 s{S_SOK}, {qt*131072}",
         f"v_max_u32 v{V_T+5}, v{V_T+5}, v{r}", f"v_rcp_f32 v{r}, v{r}"]
    for kk in range(4):
        a = acc(qt, 2*kk)
        if packed: o += [f"v_pk_mul_f32 {vr(a+2*j,2)}, {vr(a+2*j,2)}, {vr(r,2)} op_sel_hi:[1,0]" for j in range(4)]
        else: o += [f"v_mul_f32 v{a+j}, v{r}, v{a+j}" for j in range(8)]
        o += [f"v_cvt_pk_bf16_f32 v{a+j}, v{a+2*j}, v{a+2*j+1}" for j in range(4)]
        o += [f"buffer_store_dwordx4 {vr(a,4)}, v{V_OA}, {srd(SRD_OW)}, s{S_SOK} offen offset:{kk*1024}{cfg.o_store}"]
    return o

def attn_end(p, cfg):
    T = V_T
    sent = srd_ex() + [f"v_mov_b32 v{V2_F+i}, -1" for i in range(4)] + \
           [f"s_lshl2_add_u32 s{S_T0}, s2, s{S_W}", f"s_mul_i32 s{S_T0}, s{S_T0}, {10*KB}", f"v_lshl_add_u32 v{V2_EI}, v0, 4, s{S_T0}"]
    for i in range(10):
        if i % 4 == 0: sent.append(f"s_mov_b32 s{S_SOX}, {i*1024}")
        sent.append(f"buffer_store_dwordx4 {vr(V2_F,4)}, v{V2_EI}, {srd(SRD_EX)}, s{S_SOX} offen offset:{(i&3)*1024} sc1")
    side = []
    if cfg.fused:
        side += p2_srd_wo() + p2_setup_wo() + p2_rot(cfg) + p2_dma_w(cfg, 0) + p2_rot(cfg) + p2_dma_w(cfg, 1)
        side += [f"s_lshl3_add_u32 s{S_SOW}, s{S_BLK}, s{S_B}", f"s_lshl_b32 s{S_SOW}, s{S_SOW}, 4",
                 f"buffer_load_dwordx4 {vr(V2_G,4)}, off, {srd(SRD_DBG)}, s{S_SOW} sc1"]
    ex = [win(flat([side + sent]), 0, 60),
          win([f"v_mov_b32 v{T+5}, 0"], 0, 20) + win(o_tile(cfg, 0), 38, 62) + win(o_tile(cfg, 1), 62, 84)]
    tail = block(p, cfg, 1, last=True, extra=ex)
    t2 = o_tile(cfg, 2, True)
    k = 0
    for op in tail:
        emit(p, [op] + t2[k:k+4]); k += 4
    emit(p, t2[k:])
    s = Sched(pv(4, V_S[1], 1))
    s.add(win(o_tile(cfg, 3), 0, 8), reach=0)
    run(p, cfg, "last pv", s)
    stamp(p, cfg, "attn_end")
    emit(p, o_tile(cfg, 4, True))
    lim = f32bits(L_LIMIT if not cfg.force_fallback else 1.0)
    p.e(f"""
    v_cmp_le_u32 vcc, {hex(lim)}, v{T+5}
    s_lshl_b32 s{S_T1}, s{S_W}, 2
    s_add_u32 s{S_T1}, s{S_T1}, {VOTE}
    v_mov_b32 v{T+1}, s{S_T1}
    s_cmp_lg_u64 vcc, 0
    s_cselect_b32 s{S_T0}, 1, 0
    v_mov_b32 v{T}, s{S_T0}
    ds_write_b32 v{T+1}, v{T}
    v_mov_b32 v{T+1}, {VOTE}
    s_waitcnt vmcnt(0) lgkmcnt(0)
    s_barrier
    ds_read_b128 v[28:31], v{T+1}
    v_or3_b32 v28, v28, v29, v30
    v_or_b32 v28, v28, v31
    v_readfirstlane_b32 s{S_T0}, v28
    s_andn2_b32 s{S_T0}, s{S_T0}, s{S_FB}
    s_cmp_lg_u32 s{S_T0}, 0
    s_cbranch_scc1 Lfallback
    """)
    stamp(p, cfg, "o_stored")

def fallback(cfg):
    p = Prog()
    p.e(f"Lfallback:\ns_mov_b32 s{S_FB}, 1\ns_mov_b32 s{S_SOK}, 0")
    emit(p, addr_flip("v_and_b32", "0xffff"))
    p.begin_loop()
    p.e(f"Lfb_loop:\ns_barrier\ns_mov_b32 m0, s{S_KW}\ns_nop 0")
    for i in range(4): p.e(f"buffer_load_dwordx4 v{V_DK+i}, {srd(SRD_K)}, s{S_SOK} offen offset:{i*1024} lds")
    p.e("s_waitcnt vmcnt(0)\ns_barrier")
    emit(p, k_reads(0))
    for qt in range(5): emit(p, qk(qt, V_S0[qt], 0, c0=True))
    for qt in range(5):
        s_ = V_S0[qt]
        emit(p, [f"v_max3_f32 v{V_MG+qt}, v{V_MG+qt}, v{s_+2*i}, v{s_+2*i+1}" for i in range(4)])
    p.e(f"s_addk_i32 s{S_SOK}, 0x2000\ns_cmp_lt_u32 s{S_SOK}, 131072\ns_cbranch_scc1 Lfb_loop")
    p.end_loop()
    p.e("s_barrier")
    for j in range(4): emit(p, kv_static(cfg, j))
    emit(p, addr_flip("v_or_b32", "0x10000"))
    p.e("s_waitcnt vmcnt(24)\ns_barrier")
    emit(p, k_reads(0) + v_reads(0))
    v = cfg.verbose; cfg.verbose = False
    block0(p, cfg, False)
    cfg.verbose = v
    p.e("s_branch Lattn_loop")
    return p

def phase1_srds(p, cfg):
    p.e(f"s_mul_i32 s{S_T0}, s{S_B}, 327680")
    mk_srd(p, SRD_X, 64, 65, f"s{S_T0}", 327680)
    p.e(f"s_lshl_b32 s{S_T0}, s{S_HP}, 9\ns_sub_u32 s{S_T1}, {1024*8192}, s{S_T0}")
    mk_srd(p, SRD_WQ, 70, 71, f"s{S_T0}", f"s{S_T1}")
def phase1_srds2(p, cfg):
    p.e(f"s_lshl4_add_u32 s{S_T0}, s{S_B}, s{S_HP}\ns_lshl_b32 s{S_T0}, s{S_T0}, 18")
    mk_srd(p, SRD_K, 66, 67, f"s{S_T0}", 262144)
    mk_srd(p, SRD_V, 68, 69, f"s{S_T0}", 262144)
    p.e(f"""
    s_mul_i32 s{S_T0}, s{S_BLK}, {WS_O_BLK}
    s_mul_i32 s{S_T1}, s{S_B}, {10*131072}
    s_add_u32 s{S_T0}, s{S_T0}, s{S_T1}
    s_lshl_b32 s{S_T1}, s{S_HP}, 13
    s_add_u32 s{S_T0}, s{S_T0}, s{S_T1}
    s_sub_u32 s{S_T1}, {10*131072}, s{S_T1}
    """)
    mk_srd(p, SRD_OW, 88, 89, f"s{S_T0}", f"s{S_T1}")
    p.e(f"s_mov_b32 s{S_SCALE}, {hex(f32bits(QSCALE))}\ns_mov_b32 s{S_FB}, 0")
def own_line(v):
    return [f"s_lshl_b32 s{S_T0}, s2, 7", f"v_lshl_add_u32 v{v}, v0, 2, s{S_T0}", f"v_and_b32 v{v+1}, 48, v0",
            f"v_lshl_add_u32 v{v}, v{v+1}, 24, v{v}"]
def flag_clear(p, cfg):
    T = V_T
    p.e(f"s_mov_b32 s{S_T1}, {WS_FL}")
    mk_srd(p, SRD_EX, 88, 89, f"s{S_T1}", 256*128)
    mk_srd(p, SRD_DBG, 86, 87, None, 256)
    emit(p, own_line(T) + [f"s_cmp_eq_u32 s{S_W}, 0", f"s_cselect_b32 s{S_W0}, 0, 0x40000000", f"v_mov_b32 v{T+2}, 0",
                           f"buffer_store_dword v{T+2}, v{T}, {srd(SRD_EX)}, s{S_W0} offen sc1"])
def flag_cleared(p, cfg):
    T = V_T
    p.e(f"""
    s_lshl3_add_u32 s{S_T0}, s{S_BLK}, s{S_B}
    s_lshl4_add_u32 s{S_T0}, s{S_T0}, s{S_HP}
    v_lshl_add_u32 v{T}, v0, 24, s{S_T0}
    v_mov_b32 v{T+1}, 1
    buffer_store_byte v{T+1}, v{T}, {srd(SRD_DBG)}, s{S_W0} offen sc1
    """)
def srd_ex(): return [f"s_mov_b32 s{S_T1}, {WS_EX}"] + srd_lines(SRD_EX, 88, 89, f"s{S_T1}", 256*40*KB)

V2_DW, V2_DX, V2_WC, V2_XC = 228, 232, 237, 241
V2_EI, V2_EO, V2_OUT, V2_F, V2_G = 243, 244, 245, 248, 232
P2_FA = 0
P2_FB = [32, 72]
def acc2(mt, v): return ACC + 16*mt + 4*v

def p2_srd_wo():
    return [f"s_lshl_b32 s{S_T0}, s{S_KH}, 22", f"s_lshl_b32 s{S_T1}, s{S_NT}, 8", f"s_add_u32 s{S_T0}, s{S_T0}, s{S_T1}",
            f"s_sub_u32 s{S_T1}, {2048*2048}, s{S_T1}"] + srd_lines(SRD_WO, 72, 73, f"s{S_T0}", f"s{S_T1}")
def p2_setup_wo():
    a, b = V2_DW, V2_DW + 1
    o = [f"v_lshrrev_b32 v{a}, 4, v0", f"v_lshlrev_b32 v{b}, 1, v{a}", f"v_xor_b32 v{b}, v{b}, v0", f"v_and_b32 v{b}, 15, v{b}",
         f"s_lshl_b32 s{S_T0}, s{S_W}, 15", f"v_lshl_add_u32 v{a}, v{a}, 11, s{S_T0}", f"v_lshl_add_u32 v{a}, v{b}, 4, v{a}",
         f"v_xor_b32 v{b}, 128, v{a}", f"v_add_u32 v{a+2}, {2*7168}, v{a}", f"v_add_u32 v{a+3}, {3*7168}, v{b}", f"v_add_u32 v{b}, 7168, v{b}"]
    return o + [f"s_mov_b32 s{S_STEP}, 0", f"s_lshl1_add_u32 s{S_PHI}, s{S_NT}, s{S_B}"]
def p2_setup_rest():
    T = V_T
    o = [f"s_mul_i32 s{S_T0}, s{S_BLK}, {WS_O_BLK}", f"s_mul_i32 s{S_T1}, s{S_B}, {10*131072}", f"s_add_u32 s{S_T0}, s{S_T0}, s{S_T1}",
         f"s_lshl_b32 s{S_T1}, s{S_KH}, 16", f"s_add_u32 s{S_T0}, s{S_T0}, s{S_T1}", f"s_sub_u32 s{S_T1}, {10*131072}, s{S_T1}"]
    o += srd_lines(SRD_OR, 88, 89, f"s{S_T0}", f"s{S_T1}")
    o += [f"s_mul_i32 s{S_T0}, s{S_B}, {160*4096}", f"s_lshl_b32 s{S_T1}, s{S_BLK}, 11", f"s_lshl_b32 s{S_T2}, s{S_NT}, 8",
          f"s_add_u32 s{S_T1}, s{S_T1}, s{S_T2}", f"s_add_u32 s{S_T0}, s{S_T0}, s{S_T1}", f"s_sub_u32 s{S_T1}, {160*4096}, s{S_T1}"]
    o += srd_lines(SRD_OUT, 84, 85, f"s{S_T0}", f"s{S_T1}")
    o += [f"v_lshlrev_b32 v{T}, 4, v0", f"s_mul_i32 s{S_T0}, s{S_W}, 5", f"s_mul_i32 s{S_XW}, s{S_W}, {5*KB}"]
    for i in range(5):
        o += [f"s_add_u32 s{S_T1}, s{S_T0}, {i}", f"s_lshr_b32 s{S_T2}, s{S_T1}, 1", f"s_lshl_b32 s{S_T2}, s{S_T2}, 7",
              f"s_and_b32 s{S_T1}, s{S_T1}, 1", f"s_add_u32 s{S_T1}, s{S_T1}, s{S_T2}", f"s_sub_u32 s{S_T1}, s{S_T1}, {i&3}",
              f"s_lshl_b32 s{S_T1}, s{S_T1}, 10", f"v_add_u32 v{V2_DX+i}, s{S_T1}, v{T}"]
    o += [f"s_mul_i32 s{S_T0}, s{S_HH}, {10*KB}", f"s_add_u32 s{S_T0}, s{S_T0}, {P2X}", f"v_add_u32 v{V2_XC}, s{S_T0}, v{T}",
          f"v_add_u32 v{V2_XC+1}, {40*KB}, v{V2_XC}",
          f"s_xor_b32 s{S_T0}, s2, 2", f"s_lshl2_add_u32 s{S_T0}, s{S_T0}, s{S_W}", f"s_mul_i32 s{S_T0}, s{S_T0}, {10*KB}",
          f"v_add_u32 v{V2_EO}, s{S_T0}, v{T}",
          f"s_lshl2_add_u32 s{S_T0}, s2, s{S_W}", f"s_mul_i32 s{S_T0}, s{S_T0}, {10*KB}", f"v_add_u32 v{V2_EI}, s{S_T0}, v{T}",
          f"v_lshrrev_b32 v{T}, 2, v0", f"v_and_b32 v{T+1}, 7, v{T}", f"v_lshlrev_b32 v{T}, 8, v{T}", f"v_and_b32 v{T+2}, 3, v0",
          f"v_lshl_add_u32 v{T}, v{T+2}, 3, v{T}", f"s_lshl_b32 s{S_T0}, s{S_P}, 2", f"s_lshl1_add_u32 s{S_T0}, s{S_KH}, s{S_T0}",
          f"v_xor_b32 v{T+1}, s{S_T0}, v{T+1}", f"v_lshl_add_u32 v{V2_WC}, v{T+1}, 5, v{T}"]
    o += [f"v_xor_b32 v{V2_WC+v}, {32*v}, v{V2_WC}" for v in range(1, 4)]
    o += [f"v_and_b32 v{T}, 15, v0", f"s_mul_i32 s{S_T0}, s{S_HH}, {80*4096}", f"s_lshl_b32 s{S_T1}, s{S_P}, 7",
          f"s_add_u32 s{S_T0}, s{S_T0}, s{S_T1}", f"s_lshl_b32 s{S_T1}, s{S_KH}, 6", f"s_add_u32 s{S_T0}, s{S_T0}, s{S_T1}",
          f"v_lshl_add_u32 v{T}, v{T}, 12, s{S_T0}", f"v_bfe_u32 v{T+1}, v0, 4, 1", f"v_lshl_add_u32 v{T}, v{T+1}, 5, v{T}",
          f"v_lshrrev_b32 v{T+1}, 5, v0", f"v_lshl_add_u32 v{V2_OUT}, v{T+1}, 4, v{T}"]
    o += [f"v_mov_b64 {vr(ACC+2*i,2)}, 0" for i in range(40)]
    return o

def p2_rot(cfg): return rot(cfg.rot2, [(S_SOX, 11), (S_SOW, 17)])
def p2_dma_w(cfg, sl): return dma_run(V2_DW, 4, SRD_WO, S_SOW, lambda k: f"s_add_u32 m0, s{S_KW}, {P2W + sl*16*KB}", cfg.f_wo)
def p2_dma_x(cfg, sl): return dma_run(V2_DX, 5, SRD_OR, S_SOX, lambda k: f"s_add_u32 m0, s{S_XW}, {P2X + sl*20*KB + k*4096}", cfg.o_load)
def p2_rd_a(v, sl):
    return [f"ds_read_b64_tr_b16 {ar(P2_FA+8*v+4*kk+2*j,2)}, v{V2_WC+v} offset:{P2W + sl*16*KB + (kk*32+j*16)*256}" for kk in range(2) for j in range(2)]
def p2_rd_b(buf, sl):
    return [f"ds_read_b128 {ar(P2_FB[buf]+8*mt+4*kk,4)}, v{V2_XC+(sl>>1)} offset:{(sl&1)*20*KB + mt*2048 + kk*1024}" for mt in range(5) for kk in range(2)]
def p2_group(v, buf):
    m = []
    for mt in range(5):
        d = vr(acc2(mt, v), 4)
        m += [f"{M16} {d}, {ar(P2_FA+8*v+4*kk,4)}, {ar(P2_FB[buf]+8*mt+4*kk,4)}, {d}" for kk in range(2)]
    return m
def p2_period(p, cfg, st, dma, vm):
    buf, nx = st & 1, (st + 1) & 3
    s = Sched(p2_group(1, buf) + p2_group(2, buf) + p2_group(3, buf) + p2_group(0, buf ^ 1))
    s.put(-1, [f"s_waitcnt vmcnt({vm}) lgkmcnt(0)", "s_barrier"])
    if dma: s.add(win(flat([p2_rot(cfg)]), 0, 2) + win(p2_dma_w(cfg, st & 3) + p2_dma_x(cfg, st & 3), 2, 39), reach=2)
    seq = []
    for v in range(4): seq += win(p2_rd_a(v, nx), 10*v, 10*v + (9 if v < 3 else 5))
    s.add(seq, reach=2).add(win(p2_rd_b(buf ^ 1, nx), 0, 24), reach=2)
    run(p, cfg, "p2 period", s)

def phase2(p, cfg):
    if cfg.fused:
        T = V_T
        sl = f"s_sleep {cfg.poll_sleep}" if cfg.poll_sleep else ""
        p.e(f"s_mov_b32 s{S_T1}, {WS_FL}")
        mk_srd(p, SRD_FL, 88, 89, f"s{S_T1}", 256*128)
        p.e(f"""
        s_cmp_lg_u32 s{S_W}, 0
        s_cbranch_scc1 Lpub_done
        s_mov_b32 s{S_SPIN}, {SPIN_MAX}
        s_branch Lini_test
        Lini_poll:
        buffer_load_dwordx4 {vr(V2_G,4)}, off, {srd(SRD_DBG)}, s{S_SOW} sc1
        s_waitcnt vmcnt(0)
        Lini_test:
        v_and_b32 v{T}, v{V2_G}, v{V2_G+1}
        v_and_b32 v{T+1}, v{V2_G+2}, v{V2_G+3}
        v_and_b32 v{T}, v{T}, v{T+1}
        s_sub_u32 s{S_SPIN}, s{S_SPIN}, 1
        s_cbranch_scc1 Lini_done
        v_readfirstlane_b32 s{S_T0}, v{T}
        s_nop 1
        s_cmp_lg_u32 s{S_T0}, 0x01010101
        s_cbranch_scc1 Lini_poll
        Lini_done:
        v_and_b32 v{T}, 3, v0
        v_bfe_u32 v{T+1}, v0, 2, 2
        v_lshl_add_u32 v{T}, v{T}, 3, v{T+1}
        s_lshl_b32 s{S_T0}, s{S_B}, 5
        s_lshl2_add_u32 s{S_T0}, s{S_BLK}, s{S_T0}
        s_lshl_b32 s{S_T0}, s{S_T0}, 5
        s_add_u32 s{S_T0}, s{S_T0}, s{S_HP}
        s_lshl_b32 s{S_T0}, s{S_T0}, 2
        v_lshl_add_u32 v{T}, v{T}, 7, s{S_T0}
        v_and_b32 v{T+1}, 48, v0
        v_lshl_add_u32 v{T}, v{T+1}, 24, v{T}
        v_mov_b32 v{T+1}, 1
        buffer_store_dword v{T+1}, v{T}, {srd(SRD_FL)}, 0 offen sc1
        Lpub_done:
        """)
        emit(p, p2_setup_rest())
        emit(p, own_line(T))
        p.e(f"""
        s_cmp_lg_u32 s{S_W}, 0
        s_cbranch_scc1 Lpoll_done
        s_mov_b32 s{S_SPIN}, {SPIN_MAX}
        s_branch Lpoll1
        Lpoll:
        {sl}
        Lpoll1:
        buffer_load_dword v{T+2}, v{T}, {srd(SRD_FL)}, 0 offen sc1
        s_sub_u32 s{S_SPIN}, s{S_SPIN}, 1
        s_cbranch_scc1 Lpoll_done
        s_waitcnt vmcnt(0)
        v_cmp_eq_u32 vcc, 1, v{T+2}
        s_nop 4
        s_cmp_lg_u32 vcc_lo, 0xffff
        s_cbranch_scc1 Lpoll
        Lpoll_done:
        s_waitcnt vmcnt(0)
        s_barrier
        """)
        stamp(p, cfg, "polled")
        p.e(f"s_mov_b32 s{S_STEP}, 0")
        emit(p, p2_rot(cfg) + p2_dma_x(cfg, 0) + p2_rot(cfg) + p2_dma_x(cfg, 1))
        p.e("s_waitcnt vmcnt(5)\ns_barrier")
    else:
        emit(p, p2_srd_wo() + p2_setup_wo() + p2_rot(cfg) + p2_dma_w(cfg, 0) + srd_ex() + p2_setup_rest() + p2_dma_x(cfg, 0))
        emit(p, p2_rot(cfg) + p2_dma_w(cfg, 1) + p2_dma_x(cfg, 1))
        p.e("s_waitcnt vmcnt(9)\ns_barrier")
    stamp(p, cfg, "p2_first")
    rb = p2_rd_b(0, 0)
    emit(p, rb[:2] + p2_rd_a(0, 0) + rb[2:] + p2_rd_a(1, 0) + p2_rd_a(2, 0) + p2_rd_a(3, 0))
    emit(p, p2_rot(cfg) + p2_dma_w(cfg, 2) + p2_dma_x(cfg, 2))
    s = Sched(p2_group(0, 0))
    emit(p, p2_rot(cfg))
    s.add(win(p2_dma_w(cfg, 3) + p2_dma_x(cfg, 3), 0, 9), reach=0)
    run(p, cfg, "p2 group 0", s)
    p.begin_loop()
    p.e("Lp2_loop:")
    for st in range(4): p2_period(p, cfg, st, True, 18)
    p.e(f"s_cmp_lt_u32 s{S_STEP}, 32\ns_cbranch_scc1 Lp2_loop")
    p.end_loop()
    p2_period(p, cfg, 0, False, 18)
    p2_period(p, cfg, 1, False, 9)
    p2_period(p, cfg, 2, False, 0)
    s = Sched(p2_group(2, 1) + p2_group(3, 1) + p2_group(1, 1))
    def send(v):
        o = []
        for mt in range(5):
            i = 2*mt + v - 2
            o += [f"s_mov_b32 s{S_SOX}, {(i >> 2)*4096}",
                  f"buffer_store_dwordx4 {vr(acc2(mt, v),4)}, v{V2_EO}, {srd(SRD_EX)}, s{S_SOX} offen offset:{(i&3)*1024} sc1"]
        return o
    s.add(win(send(2), 10, 19) + win(send(3), 20, 29), reach=0)
    run(p, cfg, "p2 last", s)
    stamp(p, cfg, "p2_mfma_end")
    R = 112
    p.e(f"s_mov_b32 s{S_SPIN}, {SPIN_MAX}\nLex_poll:")
    for i in range(10):
        if i % 4 == 0: p.e(f"s_mov_b32 s{S_SOX}, {i*1024}")
        p.e(f"buffer_load_dwordx4 {vr(R+4*i,4)}, v{V2_EI}, {srd(SRD_EX)}, s{S_SOX} offen offset:{(i&3)*1024} sc1")
    p.e(f"s_sub_u32 s{S_SPIN}, s{S_SPIN}, 1\ns_cbranch_scc1 Lex_done\ns_waitcnt vmcnt(0)")
    p.e(f"v_max_u32 v{V_T}, v{R}, v{R+1}")
    for i in range(1, 20): p.e(f"v_max3_u32 v{V_T}, v{V_T}, v{R+2*i}, v{R+2*i+1}")
    p.e(f"v_cmp_eq_u32 vcc, -1, v{V_T}\ns_nop 4\ns_cbranch_vccnz Lex_poll\nLex_done:\ns_waitcnt vmcnt(0)")
    stamp(p, cfg, "p2_exch")
    for mt in range(5):
        a = acc2(mt, 0)
        o = [f"v_pk_add_f32 {vr(a+2*j,2)}, {vr(a+2*j,2)}, {vr(R+8*mt+2*j,2)}" for j in range(4)]
        o += [f"v_cvt_pk_bf16_f32 v{a+j}, v{a+2*j}, v{a+2*j+1}" for j in range(4)]
        o += [f"s_mov_b32 s{S_T0}, {mt*65536}", f"v_permlane16_swap_b32 v{a}, v{a+2}", f"v_permlane16_swap_b32 v{a+1}, v{a+3}",
              f"buffer_store_dwordx4 {vr(a,4)}, v{V2_OUT}, {srd(SRD_OUT)}, s{S_T0} offen"]
        emit(p, o)
    stamp(p, cfg, "p2_end")

def kernel1(cfg):
    p = Prog()
    entry(p, cfg, "Lexit1")
    stamp(p, cfg, "start")
    q_setup_dma(p)
    p.e("s_waitcnt lgkmcnt(0)")
    select_ptrs(p)
    phase1_srds(p, cfg)
    phase1a(p, cfg)
    phase1b(p, cfg)
    attn_end(p, cfg)
    if cfg.fused: phase2(p, cfg)
    stamp_flush(p, cfg, 0)
    p.e("Lexit1:\ns_endpgm")
    return [p, fallback(cfg)]

def kernel2(cfg):
    p = Prog()
    entry(p, cfg, "Lexit2")
    stamp(p, cfg, "k2_start")
    p.e(f"s_lshl_b32 s{S_KW}, s{S_W}, 12\ns_waitcnt lgkmcnt(0)")
    select_ptrs(p)
    phase2(p, cfg)
    stamp_flush(p, cfg, 1)
    p.e("Lexit2:\ns_endpgm")
    return [p]

def descriptor(name):
    return f""".section .rodata,"a"
.p2align 6
.amdhsa_kernel {name}
  .amdhsa_next_free_vgpr 512
  .amdhsa_next_free_sgpr 102
  .amdhsa_accum_offset 256
  .amdhsa_group_segment_fixed_size 0
  .amdhsa_kernarg_size 104
  .amdhsa_user_sgpr_count 2
  .amdhsa_user_sgpr_kernarg_segment_ptr 1
  .amdhsa_system_sgpr_workgroup_id_x 1
.end_amdhsa_kernel
"""
def build(cfg):
    ref = open(f"cdna_kernels/{NAME}.s.ref").read().split("\n")
    head = [l for l in ref if l.startswith(";") and "@launch" not in l and not l.startswith("; Override") and not l.startswith("; grid=")]
    ks = [(NAME + "_kernel", kernel1(cfg))] if cfg.fused else [("attn_kernel", kernel1(cfg)), ("oproj_kernel", kernel2(cfg))]
    out = "\n".join(head) + "\n"
    for n, _ in ks:
        out += f"; @launch {'' if cfg.fused else 'kernel=' + n + ' '}grid=(256,1,1) block=(256,1,1) lds={LDS_BYTES}\n"
    if cfg.stamps: out += "; stamps: " + ",".join(STAMPS) + "\n"
    out += '.amdgcn_target "amdgcn-amd-amdhsa--gfx950"\n'
    for n, ps in ks:
        out += f".text\n.globl {n}\n.p2align 8\n.type {n},@function\n{n}:\n"
        for p in ps:
            p.insert_lgkm_waits()
            pad = p.hazards()
            if cfg.verbose: print(f"{n}: {sum(len(i) for _, i in p.segs)} lines, nop pad {pad}", file=sys.stderr)
            out += p.text()
    for n, _ in ks: out += descriptor(n)
    return out

if __name__ == "__main__":
    cfg = Cfg()
    outp = f"cdna_kernels/{NAME}.s"
    for a in sys.argv[1:]:
        if a.startswith("-o="): outp = a[3:]; continue
        k, v = a.split("=", 1)
        assert hasattr(cfg, k), k
        setattr(cfg, k, eval(v))
    open(outp, "w").write(build(cfg))
```

```python
import re

REG_RE = re.compile(r'\b([vas])(\d+)\b|\b([vas])\[(\d+):(\d+)\]')

def regs_of(tok):
    out = []
    for m in REG_RE.finditer(tok):
        if m.group(1):
            out.append((m.group(1), int(m.group(2))))
        else:
            out += [(m.group(3), i) for i in range(int(m.group(4)), int(m.group(5)) + 1)]
    t = tok.strip()
    if t in ('vcc', 'vcc_lo'): out += [('s', 'vcc')]
    if t == 'm0': out += [('s', 'm0')]
    if t == 'exec': out += [('s', 'exec')]
    return out

TRANS = ('v_exp_f32', 'v_log_f32', 'v_rcp_f32', 'v_rsq_f32', 'v_sqrt_f32', 'v_sin_f32', 'v_cos_f32')

class Ins:
    __slots__ = ('text', 'op', 'defs', 'uses', 'kind', 'ops', 'wait_lgkm', 'srcc', 'passes', 'states')
    def __init__(self, text):
        self.text = text
        code = text.split(';')[0].strip()
        self.defs, self.uses, self.srcc = [], [], []
        self.wait_lgkm = None
        self.passes = 0
        self.states = 1
        if not code or code.endswith(':') or code.startswith('.'):
            self.op, self.kind, self.ops, self.states = '', 'label', [], 0
            return
        parts = code.split(None, 1)
        op = self.op = parts[0]
        rest = parts[1] if len(parts) > 1 else ''
        ops = self.ops = [o.strip() for o in rest.split(',')] if rest else []
        R = lambda i: regs_of(ops[i].split()[0]) if i < len(ops) and ops[i] else []
        if op.startswith('v_mfma'):
            self.kind = 'mfma'
            self.defs = R(0); self.uses = R(1) + R(2); self.srcc = R(3)
            self.passes = 8 if '32x32' in op else 4
        elif op.startswith('ds_read'):
            self.kind = 'dsr'; self.defs = R(0); self.uses = R(1)
        elif op.startswith('ds_write'):
            self.kind = 'dsw'; self.uses = R(0) + R(1) + R(2)
        elif op.startswith('buffer_load'):
            if re.search(r'\blds\b', rest):
                self.kind = 'dma'; self.uses = R(0) + R(1) + R(2) + [('s', 'm0')]
            else:
                self.kind = 'vld'; self.defs = R(0); self.uses = R(1) + R(2) + R(3)
        elif op.startswith('buffer_store') or op.startswith('buffer_atomic'):
            self.kind = 'vst'; self.uses = R(0) + R(1) + R(2) + R(3)
        elif op.startswith('buffer_'):
            self.kind = 'vmisc'
        elif op.startswith('v_'):
            self.kind = 'valu'
            if op.startswith('v_permlane') and 'swap' in op:
                self.defs = R(0) + R(1); self.uses = R(0) + R(1)
            elif op.startswith('v_cmp'):
                self.defs = R(0); self.uses = R(1) + R(2)
            else:
                self.defs = R(0)
                for i in range(1, len(ops)): self.uses += R(i)
                if op.startswith('v_fmac') or op.startswith('v_pk_fmac') or op.startswith('v_dot2c'):
                    self.uses += R(0)
        elif op == 's_waitcnt':
            self.kind = 'wait'
            m = re.search(r'lgkmcnt\((\d+)\)', rest)
            if m: self.wait_lgkm = int(m.group(1))
        elif op == 's_nop':
            self.kind = 'nop'; self.states = int(ops[0], 0) + 1
        elif op.startswith('s_load') or op.startswith('s_memtime') or op.startswith('s_memrealtime'):
            self.kind = 'smem'; self.defs = R(0); self.uses = R(1)
        elif op.startswith('s_'):
            self.kind = 'salu'
            if op.startswith('s_cmp') or op.startswith('s_bitcmp') or op.startswith('s_cbranch') or op in ('s_barrier', 's_branch', 's_endpgm', 's_sleep', 's_setprio'):
                for i in range(len(ops)): self.uses += R(i)
            else:
                self.defs = R(0)
                for i in range(1, len(ops)): self.uses += R(i)
        else:
            raise ValueError('unknown op: ' + text)

class Prog:
    def __init__(self):
        self.segs = [('lin', [])]
    def e(self, text):
        for line in text.strip('\n').split('\n'):
            line = line.strip()
            if line: self.segs[-1][1].append(Ins(line))
    def begin_loop(self):
        self.segs.append(('loop', []))
    def end_loop(self):
        self.segs.append(('lin', []))
    def trace(self):
        t = []
        for k, ins in self.segs:
            t += ins * (2 if k == 'loop' else 1)
        return t
    def insert_lgkm_waits(self):
        need = {}
        changed = True
        while changed:
            changed = False
            out = []
            for i in self.trace():
                n = need.get(id(i))
                if n is not None: out = out[len(out) - n:] if n < len(out) else out
                if i.kind == 'wait':
                    if i.wait_lgkm is not None:
                        n = i.wait_lgkm
                        out = out[len(out) - n:] if n < len(out) else out
                    continue
                if i.kind == 'label': continue
                touched = set(i.uses) | set(i.srcc) | set(i.defs)
                last = -1
                for j, d in enumerate(out):
                    if d & touched: last = j
                if last >= 0:
                    n = min(len(out) - 1 - last, 15)
                    if need.get(id(i), 99) > n:
                        need[id(i)] = n; changed = True
                    out = out[len(out) - n:] if n > 0 else []
                if i.kind == 'dsr': out.append(set(i.defs))
                elif i.kind == 'dsw': out.append(set())
                elif i.kind == 'smem': out.append(set())
        for k, (kind, ins) in enumerate(self.segs):
            new = []
            for i in ins:
                if id(i) in need: new.append(Ins(f's_waitcnt lgkmcnt({need[id(i)]})'))
                new.append(i)
            self.segs[k] = (kind, new)
    def hazards(self, fix=True):
        total_pad = 0
        while True:
            t = [i for i in self.trace()]
            guarded, g = set(), None
            for q, i in enumerate(t):
                if g is None and i.op == 's_cbranch_scc0' and i.ops[0].startswith('Lg'): g = i.ops[0] + ':'
                elif g is not None:
                    if i.text.strip() == g: g = None
                    else: guarded.add(q)
            viol = None
            for idx, c in enumerate(t):
                if c.kind in ('label', 'nop', 'wait'): continue
                dist = 0
                j = idx - 1
                cu, cd, cc = set(c.uses), set(c.defs), set(c.srcc)
                while j >= 0 and dist < 20:
                    p = t[j]
                    req = 0
                    pd = set(p.defs)
                    if p.kind == 'valu':
                        vd = {r for r in pd if r[0] in 'va'}
                        sd = {r for r in pd if r[0] == 's'}
                        if c.kind == 'mfma' and vd & (cu | cc): req = 2
                        if c.op.startswith('v_permlane') and vd & cu: req = 2
                        if c.op.startswith(('v_readlane', 'v_readfirstlane')) and vd & cu: req = max(req, 1)
                        if p.op.startswith(TRANS) and c.kind == 'valu' and not c.op.startswith(TRANS) and vd & cu: req = max(req, 1)
                        if c.kind in ('dma', 'vld', 'vst') and sd & cu: req = max(req, 5)
                        if c.kind == 'valu' and sd & cu: req = max(req, 2)
                        if c.kind == 'salu' and sd & cu: req = max(req, 2)
                    elif p.kind == 'mfma':
                        big = p.passes == 8
                        if c.kind == 'mfma':
                            if pd & cu: req = 12 if big else 8
                            if pd & cc and pd != cc: req = max(req, 10 if big else 6)
                            if pd & cd and not (pd & cc): req = max(req, 12 if big else 8)
                        elif c.kind in ('valu', 'dsr', 'dsw', 'vld', 'vst', 'dma'):
                            if pd & (cu | cd): req = 12 if big else 8
                            if c.kind == 'valu' and set(p.srcc) & cd: req = max(req, 7 if big else 3)
                    elif p.kind == 'salu':
                        if ('s', 'm0') in pd and c.kind == 'dma': req = 1
                    elif p.kind == 'vst':
                        if ('x4' in p.op or 'x3' in p.op) and c.kind in ('valu', 'dsr', 'vld', 'mfma') and set(regs_of(p.ops[0])) & cd: req = 2
                    if req > dist:
                        viol = (c, req - dist, p); break
                    if j not in guarded or idx in guarded: dist += p.states
                    j -= 1
                if viol: break
            if not viol: return total_pad
            c, n, p = viol
            if not fix: raise RuntimeError(f'hazard: {p.text} -> {c.text} needs {n} more')
            for k, (kind, ins) in enumerate(self.segs):
                for q, i in enumerate(ins):
                    if i is c:
                        ins.insert(q, Ins(f's_nop {n - 1}'))
                        total_pad += n
                        break
                else: continue
                break
    def text(self):
        o = []
        for k, ins in self.segs:
            for i in ins:
                o.append(i.text if i.kind == 'label' else '    ' + i.text)
        return '\n'.join(o) + '\n'

def weave(mfmas, fillers):
    out = list(fillers.get(-1, []))
    for g, m in enumerate(mfmas):
        out.append(m)
        out += fillers.get(g, [])
    return out

def spread(fillers, items, g0, g1):
    n = len(items)
    for k, it in enumerate(items):
        g = g0 + (k * (g1 - g0 + 1)) // n
        fillers.setdefault(g, [])
        fillers[g] += it if isinstance(it, list) else [it]
```

```python
import sys, math, struct
from asmir import Prog, Ins
from sched import Sched, flat, win

NAME = "concat_heads__mha_block_cached__mha_block_cached__near_ridge"
KB = 1024
M16 = "v_mfma_f32_16x16x32_bf16"

class Cfg:
    fused = True
    stamps = False
    f_kv = " nt"
    f_xw = ""
    f_wo = ""
    o_store = " sc1"
    o_load = " sc1"
    rot1 = 4
    rot2 = 4
    force_fallback = False
    poll_sleep = 4
    ring = 4
    thr = 6
    thr_q = None
    exch = 'flag'
    sent_early = False
    wo_pf_end = False
    wo_pf_poll = True
    ql_hi = 20
    b0_hi = 60
    skip = 4
    a_vm = 8
    a_hi = 80
    pf_mask = 0
    pf_spread = 1
    pf_fl = ""
    wo_pf = None
    verbose = True
    loop_stamps = False
    alt = None

S_W, S_P, S_HH = 4, 5, 6
SRD_X, SRD_WQ, SRD_K, SRD_V, SRD_OW, SRD_WO, SRD_OUT, SRD_DBG, SRD_OR, SRD_TS = 8, 12, 16, 20, 24, 28, 32, 36, 40, 44
S_BLK, S_B, S_HP, S_KH, S_NT = 48, 49, 50, 51, 52
S_STEP, S_PHI, S_SOX, S_SOW = 53, 54, 55, 56
S_WR, S_XR, S_WD, S_XD = 57, 58, 59, 60
S_T0, S_T1, S_T2 = 61, 62, 63
S_SCALE = 74
SRD_EX = 76
S_NB, S_KD, S_SPIN, S_W0 = 80, 81, 82, 83
S_SKIP, S_PER, S_PFM, S_PFO = 3, 7, 93, 75
S_KR, S_DLT = 57, 58
SRD_PF = 40
V_PF = 225
SRD_FL = 8
S_XW, S_WW, S_SOK, S_FB, S_KW = 90, 91, 92, 94, 95
S_TS = 96

def srd(n): return f"s[{n}:{n+3}]"
def vr(a, n): return f"v[{a}:{a+n-1}]" if n > 1 else f"v{a}"
def ar(a, n): return f"a[{a}:{a+n-1}]" if n > 1 else f"a{a}"
def f32bits(x): return struct.unpack("<I", struct.pack("<f", x))[0]

WSLOT = [32*KB, 64*KB, 0]
XSLOT = [136*KB, 96*KB, 116*KB]
RING = [64*KB, 96*KB, 0, 32*KB]
QSCR = 128*KB
VOTE = 159*KB
P2W, P2X = 0, 64*KB
LDS_BYTES = 160*KB

WS_O_BLK = 80*128*KB
WS_EX = 32*KB*KB
WS_FL = 48*KB*KB
WS_TS = 128*KB*KB
QSCALE = (128 ** -0.5) * math.log2(math.e)
L_LIMIT = 2.0 ** 24
SPIN_MAX = 1 << 15

STAMPS = []
def stamp(p, cfg, name):
    if not cfg.stamps: return
    idx = len(STAMPS); STAMPS.append(name)
    p.e(f"""
    s_memrealtime s[{S_TS}:{S_TS+1}]
    s_memtime s[{S_TS+2}:{S_TS+3}]
    s_waitcnt lgkmcnt(0)
    v_writelane_b32 v255, s{S_TS}, {2*idx}
    v_writelane_b32 v255, s{S_TS+2}, {2*idx+1}
    """)
def stamp_dyn(p, cfg, names, idx_lines):
    if not (cfg.stamps and cfg.loop_stamps): return
    base = len(STAMPS); STAMPS.extend(names)
    emit(p, [f"s_memrealtime s[{S_TS}:{S_TS+1}]", f"s_memtime s[{S_TS+2}:{S_TS+3}]"] + idx_lines +
            [f"s_lshl1_add_u32 m0, s{S_T2}, {2*base}", "s_waitcnt lgkmcnt(0)", f"v_writelane_b32 v255, s{S_TS}, m0",
             "s_add_u32 m0, m0, 1", "s_nop 0", f"v_writelane_b32 v255, s{S_TS+2}, m0"])
def stamp_flush(p, cfg, which):
    if not cfg.stamps: return
    p.e(f"s_mov_b32 s{S_T0}, {WS_TS}")
    mk_srd(p, SRD_TS, 88, 89, f"s{S_T0}", 1 << 20)
    p.e(f"""
    s_getreg_b32 s{S_TS}, hwreg(HW_REG_XCC_ID)
    s_nop 0
    v_writelane_b32 v255, s{S_TS}, 63
    v_lshlrev_b32 v254, 2, v0
    s_lshl_b32 s{S_TS}, s2, 2
    s_add_u32 s{S_TS}, s{S_TS}, s{S_W}
    s_lshl_b32 s{S_TS}, s{S_TS}, 8
    s_add_u32 s{S_TS}, s{S_TS}, {which*256*4*256}
    s_nop 0
    buffer_store_dword v255, v254, {srd(SRD_TS)}, s{S_TS} offen
    """)

def srd_lines(n, lo, hi, off, size):
    l = [f"s_mov_b32 s{n}, s{lo}", f"s_mov_b32 s{n+1}, s{hi}"] if off is None else \
        [[f"s_add_u32 s{n}, s{lo}, {off}", f"s_addc_u32 s{n+1}, s{hi}, 0"]]
    return l + [f"s_mov_b32 s{n+2}, {size}", f"s_mov_b32 s{n+3}, 0x20000"]
def un(l):
    o = []
    for x in l: o += un(x) if isinstance(x, list) else [x]
    return o
def emit(p, l): p.e("\n".join(un(l)))
def mk_srd(p, n, lo, hi, off, size): emit(p, srd_lines(n, lo, hi, off, size))
def run(p, cfg, name, s):
    if cfg.verbose: print(f"   {name}: {len(s.m)} mfma, estimate {s.est()} cycles", file=sys.stderr)
    emit(p, s.lines())

def entry(p, cfg, label_exit):
    p.e(f"""
    s_cmp_ge_u32 s2, 256
    s_cbranch_scc1 {label_exit}
    s_load_dwordx16 s[64:79], s[0:1], 0
    s_load_dwordx8 s[80:87], s[0:1], 64
    s_load_dwordx2 s[88:89], s[0:1], 96
    v_lshrrev_b32 v1, 6, v0
    v_and_b32 v0, 63, v0
    v_readfirstlane_b32 s{S_W}, v1
    s_bfe_u32 s{S_BLK}, s2, 0x10002
    s_lshr_b32 s{S_B}, s2, 5
    s_and_b32 s{S_HP}, s2, 3
    s_lshl_b32 s{S_HP}, s{S_HP}, 2
    s_bfe_u32 s{S_T2}, s2, 0x20003
    s_add_u32 s{S_HP}, s{S_HP}, s{S_T2}
    s_and_b32 s{S_P}, s{S_W}, 1
    s_lshr_b32 s{S_HH}, s{S_W}, 1
    s_lshr_b32 s{S_KH}, s{S_HP}, 3
    s_and_b32 s{S_NT}, s{S_HP}, 7
    """)
def select_ptrs(p):
    p.e(f"s_cmp_eq_u32 s{S_BLK}, 0")
    for i in range(5): p.e(f"s_cselect_b64 s[{64+2*i}:{65+2*i}], s[{64+2*i}:{65+2*i}], s[{74+2*i}:{75+2*i}]")

V_T = 26
ACC = 32
def acc(qt, dt): return ACC + 32*qt + 4*dt

def rot(C, shifts):
    if C == 1:
        l = []; src = S_STEP
    else:
        l = [f"s_add_u32 s{S_T0}, s{S_STEP}, s{S_PHI}", f"s_xor_b32 s{S_T0}, s{S_T0}, s{S_STEP}",
             f"s_and_b32 s{S_T0}, s{S_T0}, {C-1}", f"s_xor_b32 s{S_T0}, s{S_T0}, s{S_STEP}"]
        src = S_T0
    l += [f"s_lshl_b32 s{r}, s{src}, {sh}" for r, sh in shifts]
    return l + [f"s_add_u32 s{S_STEP}, s{S_STEP}, 1"]

def dma_run(vo, n, sr, so, m0, fl):
    g = []
    for i in range(n):
        if i % 4 == 0: g.append(m0(i >> 2))
        g.append(f"buffer_load_dwordx4 v{vo+i}, {srd(sr)}, s{so} offen offset:{(i&3)*1024}{fl} lds")
    return g

V_DX, V_DW = 192, 197
V_XC, V_WC = 205, 207
V_XL, V_WL = 215, 217
A_FA = 0
A_FB = [104, 64]

def q_dma(cfg):
    return dma_run(V_DW, 8, SRD_WQ, S_SOW, lambda k: f"s_add_u32 m0, s{S_WD}, {k*4096}", cfg.f_xw) + \
           dma_run(V_DX, 5, SRD_X, S_SOX, lambda k: f"s_add_u32 m0, s{S_XD}, {k*4096}", cfg.f_xw)
def q_rot(cfg): return rot(cfg.rot1, [(S_SOX, 7), (S_SOW, 19)])
def q_rd_a(dt):
    return [f"ds_read_b64_tr_b16 {ar(A_FA+8*dt+4*kk+2*j,2)}, v{V_WC+dt} offset:{(kk*32+j*4)*512}" for kk in range(2) for j in range(2)]
def q_rd_b(buf):
    return [f"ds_read_b128 {ar(A_FB[buf]+8*qt+4*kk,4)}, v{V_XC+kk} offset:{qt*2048}" for qt in range(5) for kk in range(2)]
def q_group(dt, buf):
    m = []
    for qt in range(5):
        d = vr(acc(qt, dt), 4)
        m += [f"{M16} {d}, {ar(A_FA+8*dt+4*kk,4)}, {ar(A_FB[buf]+8*qt+4*kk,4)}, {d}" for kk in range(2)]
    return m
def slot_rotate(reg, seq):
    lo, hi = min(seq), max(seq)
    return [f"s_add_u32 s{reg}, s{reg}, {(hi - lo)//2}", f"s_cmp_gt_u32 s{reg}, {hi}", f"s_cselect_b32 s{reg}, {lo}, s{reg}"]

def q_setup_dma(p):
    T = V_T
    p.e(f"""
    v_lshrrev_b32 v{T}, 3, v0
    v_lshrrev_b32 v{T+1}, 4, v0
    v_xor_b32 v{T+1}, v{T+1}, v0
    v_and_b32 v{T+1}, 7, v{T+1}
    v_lshlrev_b32 v{T}, 11, v{T}
    v_lshl_add_u32 v{T}, v{T+1}, 4, v{T}
    s_mul_i32 s{S_T0}, s{S_W}, {40*2048}
    s_lshl_b32 s{S_T1}, s{S_P}, 6
    v_xor_b32 v{T}, s{S_T1}, v{T}
    v_add_u32 v{V_DX}, s{S_T0}, v{T}
    v_xor_b32 v{T+1}, 64, v{V_DX}
    """)
    for i in range(1, 5): p.e(f"v_add_u32 v{V_DX+i}, {8*i*2048 - (i&3)*1024}, v{T+1 if i & 1 else V_DX}")
    p.e(f"""
    v_lshrrev_b32 v{T}, 5, v0
    v_and_b32 v{T+1}, 31, v0
    v_lshlrev_b32 v{T+2}, 1, v{T}
    v_xor_b32 v{T+1}, v{T+1}, v{T+2}
    v_lshlrev_b32 v{T}, 13, v{T}
    v_lshl_add_u32 v{T}, v{T+1}, 4, v{T}
    s_lshl_b32 s{S_T0}, s{S_W}, 17
    v_add_u32 v{V_DW}, s{S_T0}, v{T}
    v_xor_b32 v{T}, 64, v{V_DW}
    v_xor_b32 v{T+1}, 128, v{V_DW}
    v_xor_b32 v{T+2}, 192, v{V_DW}
    """)
    for i in range(1, 8):
        src = [V_DW, T, T+1, T+2][(i & 1) + 2*(i >> 2)]
        p.e(f"v_add_u32 v{V_DW+i}, {2*i*8192 - (i&3)*1024}, v{src}")

def q_setup_rd(p):
    T = V_T
    p.e(f"""
    v_and_b32 v{T}, 15, v0
    s_mul_i32 s{S_T0}, s{S_P}, 80
    v_add_u32 v{T}, s{S_T0}, v{T}
    v_lshlrev_b32 v{T}, 7, v{T}
    v_lshrrev_b32 v{T+1}, 4, v0
    v_bfe_u32 v{T+2}, v0, 1, 3
    v_xor_b32 v{T+2}, v{T+1}, v{T+2}
    v_lshl_add_u32 v{V_XL}, v{T+2}, 4, v{T}
    v_xor_b32 v{V_XL+1}, 64, v{V_XL}
    v_bfe_u32 v{T}, v0, 2, 2
    v_lshl_add_u32 v{T+2}, v{T+1}, 3, v{T}
    v_lshlrev_b32 v{T+2}, 9, v{T+2}
    v_and_b32 v{T+3}, 3, v0
    v_lshl_add_u32 v{T+2}, v{T+3}, 3, v{T+2}
    s_lshl_b32 s{S_T0}, s{S_HH}, 8
    v_add_u32 v{T+2}, s{S_T0}, v{T+2}
    v_and_b32 v{T+1}, 1, v{T+1}
    v_lshl_add_u32 v{T}, v{T+1}, 2, v{T}
    v_lshl_add_u32 v{V_WL}, v{T}, 5, v{T+2}
    """)
    for dt in range(1, 8): p.e(f"v_xor_b32 v{V_WL+dt}, {dt*32}, v{V_WL}")

def q_period(p, cfg, buf, dma, vm, rotate=True, name="q period", extra=None):
    m = []
    for dt in range(1, 8): m += q_group(dt, buf)
    s = Sched(m + q_group(0, buf ^ 1))
    s.put(-1, [f"s_waitcnt vmcnt({vm}) lgkmcnt(0)", "s_barrier"])
    if dma: s.add(win(flat([dma]), 0, 66))
    seq = []
    for dt in range(8): seq += win(q_rd_a(dt), 10*dt, 10*dt + (9 if dt < 7 else 5))
    if extra: s.add(win(flat([extra]), 0, 64))
    s.add(seq).add(win(q_rd_b(buf ^ 1), 0, 60))
    if rotate:
        upd = lambda r, l, sr: f"v_add_u32 v{r}, s{sr}, v{l}"
        t = win(flat([slot_rotate(S_XR, XSLOT) + slot_rotate(S_WR, WSLOT)]), 65, 69)
        t += win([upd(V_XC+i, V_XL+i, S_XR) for i in range(2)] + [upd(V_WC+i, V_WL+i, S_WR) for i in range(7)], 70, 78)
        t += win([upd(V_WC+7, V_WL+7, S_WR)], 77, 79)
        s.add(t, reach=2)
    run(p, cfg, name, s)

def phase1a(p, cfg):
    p.e(f"""
    s_mov_b32 s{S_STEP}, 0
    s_lshl1_add_u32 s{S_PHI}, s{S_HP}, s{S_B}
    s_mul_i32 s{S_XW}, s{S_W}, {5*KB}
    s_lshl_b32 s{S_WW}, s{S_W}, 13
    """)
    slot = lambda s: q_rot(cfg) + [f"s_add_u32 s{S_XD}, s{S_XW}, {XSLOT[s]}", f"s_add_u32 s{S_WD}, s{S_WW}, {WSLOT[s]}"] + q_dma(cfg)
    emit(p, slot(0))
    q_setup_rd(p)
    for i in range(2): p.e(f"v_add_u32 v{V_XC+i}, {XSLOT[0]}, v{V_XL+i}")
    for i in range(8): p.e(f"v_add_u32 v{V_WC+i}, {WSLOT[0]}, v{V_WL+i}")
    for i in range(80): p.e(f"v_mov_b64 {vr(ACC+2*i,2)}, 0")
    phase1_srds2(p, cfg)
    attn_setup(p, cfg)
    pf_setup(p, cfg)
    emit(p, slot(1))
    p.e("s_waitcnt vmcnt(13)\ns_barrier")
    stamp(p, cfg, "q_first")
    rb = q_rd_b(0)
    rd = rb[:2] + q_rd_a(0) + rb[2:]
    for dt in range(1, 8): rd += q_rd_a(dt)
    emit(p, rd + slot(2))
    if cfg.fused: flag_clear(p, cfg)
    p.e(f"s_mov_b32 s{S_XR}, {XSLOT[1]}\ns_mov_b32 s{S_WR}, {WSLOT[1]}")
    p.e(f"s_add_u32 s{S_XD}, s{S_XW}, {XSLOT[0]}\ns_add_u32 s{S_WD}, s{S_WW}, {WSLOT[0]}")
    s = Sched(q_group(0, 0))
    s.add(win([f"v_add_u32 v{V_XC+i}, s{S_XR}, v{V_XL+i}" for i in range(2)] +
              [f"v_add_u32 v{V_WC+i}, s{S_WR}, v{V_WL+i}" for i in range(8)], 0, 9))
    run(p, cfg, "q group 0", s)
    dyn = lambda: q_rot(cfg) + q_dma(cfg) + [f"s_add_u32 s{S_XD}, s{S_XW}, s{S_XR}", f"s_add_u32 s{S_WD}, s{S_WW}, s{S_WR}"] + kv_pf(cfg)
    p.begin_loop()
    p.e("Lq_loop:")
    q_period(p, cfg, 0, dyn(), 13)
    q_period(p, cfg, 1, dyn(), 13)
    p.e(f"s_cmp_lt_u32 s{S_STEP}, 15\ns_cbranch_scc1 Lq_loop")
    p.end_loop()
    stamp(p, cfg, "q_loop_end")
    if cfg.fused: flag_cleared(p, cfg)
    q_period(p, cfg, 0, dyn(), 13, extra=sentinel(228, 232, S_SOK) if cfg.sent_early else None)
    q_period(p, cfg, 1, kv_static(cfg, 0), 23 if cfg.sent_early else 13, name="q p13")
    q_period(p, cfg, 0, kv_static(cfg, 1) + kv_static(cfg, 2), 8, rotate=False, name="q p14")
    stamp(p, cfg, "q_p14")

V_DK, V_DV = 1, 5
V_KC, V_VC = 7, 11
V_MG = 19
V_OA = 24
V_QW, V_QR = 252, 253
V_S = [192, 200]
V_S0 = [228, 236, 244, 200, 192]
V_NM = 208
A_Q, A_K, A_V, A_ONE, A_L = 104, [184, 0], [216, 32], 248, 64

def attn_setup(p, cfg):
    T = V_T
    p.e(f"""
    v_lshrrev_b32 v{T}, 4, v0
    s_lshl_b32 s{S_T0}, s{S_P}, 12
    s_lshl_b32 s{S_T1}, s{S_HH}, 17
    s_add_u32 s{S_T0}, s{S_T0}, s{S_T1}
    v_lshl_add_u32 v{T+1}, v{T}, 8, s{S_T0}
    v_and_b32 v{T+2}, 15, v0
    v_xor_b32 v{T+3}, v{T+2}, v{T}
    v_lshl_add_u32 v{V_DK}, v{T+3}, 4, v{T+1}
    v_xor_b32 v{V_DK+1}, 64, v{V_DK}
    v_xor_b32 v{V_DK+2}, 128, v{V_DK}
    v_xor_b32 v{V_DK+3}, 192, v{V_DK}
    v_lshlrev_b32 v{T+4}, 1, v{T}
    v_xor_b32 v{T+4}, v{T+4}, v{T+2}
    v_lshl_add_u32 v{V_DV}, v{T+4}, 4, v{T+1}
    v_xor_b32 v{V_DV+1}, 128, v{V_DV}
    s_lshl_b32 s{S_T0}, s{S_HH}, 13
    s_add_u32 s{S_T0}, s{S_T0}, {RING[0]}
    v_lshl_add_u32 v{T+1}, v{T+2}, 8, s{S_T0}
    v_lshl_add_u32 v{V_KC}, v{T+3}, 4, v{T+1}
    v_xor_b32 v{V_KC+1}, 64, v{V_KC}
    v_xor_b32 v{V_KC+2}, 128, v{V_KC}
    v_xor_b32 v{V_KC+3}, 192, v{V_KC}
    v_lshrrev_b32 v{T+1}, 2, v0
    v_and_b32 v{T+3}, 7, v{T+1}
    s_add_u32 s{S_T0}, s{S_T0}, {16*KB}
    v_lshl_add_u32 v{T+1}, v{T+1}, 8, s{S_T0}
    v_and_b32 v{T+4}, 3, v0
    v_lshl_add_u32 v{T+1}, v{T+4}, 3, v{T+1}
    v_lshl_add_u32 v{V_VC}, v{T+3}, 5, v{T+1}
    """)
    for dt in range(1, 8): p.e(f"v_xor_b32 v{V_VC+dt}, {dt*32}, v{V_VC}")
    p.e(f"""
    s_lshl_b32 s{S_KW}, s{S_W}, 12
    s_lshl_b32 s{S_T0}, s{S_W}, 12
    s_add_u32 s{S_T0}, s{S_T0}, {QSCR}
    v_lshl_add_u32 v{V_QR}, v0, 4, s{S_T0}
    v_lshrrev_b32 v{T+1}, 5, v0
    v_lshl_add_u32 v{T+1}, v{T+1}, 4, v{T+2}
    v_lshl_add_u32 v{T+1}, v{T+1}, 4, s{S_T0}
    v_and_b32 v{T}, 1, v{T}
    v_lshl_add_u32 v{V_QW}, v{T}, 3, v{T+1}
    s_lshl_b32 s{S_T0}, s{S_HH}, 12
    s_mul_i32 s{S_T1}, s{S_P}, {5*131072}
    s_add_u32 s{S_T0}, s{S_T0}, s{S_T1}
    v_lshl_add_u32 v{V_OA}, v0, 4, s{S_T0}
    v_mov_b32 v{T}, 0x3f803f80
    """)
    for t in range(5): p.e(f"v_mov_b32 v{V_MG+t}, 0xff800000")
    for i in range(4): p.e(f"v_accvgpr_write_b32 a{A_ONE+i}, v{T}")

def kv_dma(cfg, pre, m0k, m0v, thr=None):
    w = (lambda x: x) if thr is None else (lambda x: [f"s_waitcnt vmcnt({thr})", x])
    g = pre + [m0k]
    g += [w(f"buffer_load_dwordx4 v{V_DK+i}, {srd(SRD_K)}, s{S_SOK} offen offset:{i*1024}{cfg.f_kv} lds") for i in range(4)]
    g += [m0v]
    g += [w(f"buffer_load_dwordx4 v{V_DV+(i&1)}, {srd(SRD_V)}, s{S_SOK} offen offset:{i*1024}{cfg.f_kv} lds") for i in range(4)]
    return g
def kv_static(cfg, j):
    return kv_dma(cfg, [f"s_mov_b32 s{S_SOK}, {j*8192}"], f"s_add_u32 m0, s{S_KW}, {RING[j % len(RING)]}", f"s_add_u32 m0, s{S_KW}, {RING[j % len(RING)] + 16*KB}", cfg.thr_q)
def kv_dyn(cfg, odd):
    g = kv_dma(cfg, [[f"s_bitcmp0_b32 s{S_SKIP}, s{S_PER}", f"s_cselect_b32 s{S_SOK}, s{S_NB}, 0x40000000", f"s_cselect_b32 s{S_T0}, s{S_KD}, {192*KB}"],
                     f"s_cselect_b32 s{S_T1}, 0x2000, 0", f"s_add_u32 s{S_T0}, s{S_T0}, s{S_KW}"],
               f"s_mov_b32 m0, s{S_T0}", f"s_add_u32 m0, s{S_T0}, {16*KB}", cfg.thr)
    g[0] = g[0] + [g.pop(1)]
    return g + [f"s_add_u32 s{S_NB}, s{S_NB}, s{S_T1}", f"s_lshl2_add_u32 s{S_KD}, s{S_T1}, s{S_KD}",
                *([f"s_and_b32 s{S_KD}, s{S_KD}, 0x1ffff"] if cfg.ring == 4 else [[f"s_cmp_eq_u32 s{S_KD}, {160*KB}", f"s_cselect_b32 s{S_KD}, 0, s{S_KD}"]]),
                f"s_add_u32 s{S_PER}, s{S_PER}, 1"]
def skip_mask(cfg):
    m, n, j = cfg.skip, cfg.ring, 0
    while n < 16:
        if not (m >> j) & 1: n += 1
        j += 1
    return (m | (0xffffffff << j)) & 0xffffffff
_lab = [0]
def guarded(test, body):
    _lab[0] += 1
    return test + [f"s_cbranch_scc0 Lg{_lab[0]}"] + body + [f"Lg{_lab[0]}:"]
def kv_pf(cfg):
    if not cfg.pf_mask: return []
    return [guarded([f"s_bitcmp1_b32 s{S_PFM}, s{S_STEP}"],
                    [f"buffer_load_dword v25, v{V_PF}, {srd(SRD_PF)}, s{S_PFO} offen{cfg.pf_fl}", f"s_addk_i32 s{S_PFO}, 0x2000"])]
def pf_setup(p, cfg):
    if not cfg.pf_mask: return
    p.e(f"""
    s_cmp_lt_u32 s{S_W}, 2
    s_cselect_b32 s{SRD_PF}, s{SRD_K}, s{SRD_V}
    s_cselect_b32 s{SRD_PF+1}, s{SRD_K+1}, s{SRD_V+1}
    s_mov_b32 s{SRD_PF+2}, 262144
    s_mov_b32 s{SRD_PF+3}, 0x20000
    s_lshl_b32 s{S_T0}, s{S_P}, 17
    v_lshl_add_u32 v{V_PF}, v0, 7, s{S_T0}
    s_mov_b32 s{S_PFO}, 0
    s_lshr_b32 s{S_T0}, s2, 3
    s_and_b32 s{S_T0}, s{S_T0}, {cfg.pf_spread-1}
    s_lshl_b32 s{S_PFM}, {cfg.pf_mask << 4}, s{S_T0}
    """)
def wo_pf(cfg, end=False):
    T = V_T
    body = p2_srd_wo() + [f"v_lshrrev_b32 v{T}, 1, v0", f"v_and_b32 v{T+1}, 1, v0", f"v_lshlrev_b32 v{T}, 11, v{T}",
                          f"v_lshl_add_u32 v{T}, v{T+1}, 7, v{T}", f"s_lshl2_add_u32 s{S_T0}, s{S_B}, s{S_W}", f"s_lshl_b32 s{S_T0}, s{S_T0}, 17",
                          f"buffer_load_dword v25, v{T}, {srd(SRD_WO)}, s{S_T0} offen", f"s_add_u32 s{S_T0}, s{S_T0}, 65536",
                          f"buffer_load_dword v25, v{T}, {srd(SRD_WO)}, s{S_T0} offen"]
    if end: return un(body)
    return guarded([f"s_cmp_eq_u32 s{S_PER}, {cfg.wo_pf + 1}"], un(body))
def k_reads(b):
    return [f"ds_read_b128 {ar(A_K[b]+16*kt+4*kk,4)}, v{V_KC+kk} offset:{b*32*KB*(len(RING) == 4) + kt*4096}" for kt in range(2) for kk in range(4)]
def v_reads(b):
    return [f"ds_read_b64_tr_b16 {ar(A_V[b]+4*dt+2*j,2)}, v{V_VC+dt} offset:{b*32*KB*(len(RING) == 4) + j*4096}" for dt in range(8) for j in range(2)]
def addr_flip(op="v_xor_b32", c="0x10000"):
    return [f"{op} v{r}, {c}, v{r}" for r in range(V_KC, V_KC + 12)]
def ring5_step():
    return [[f"s_cmp_eq_u32 s{S_KR}, {128*KB}", f"s_cselect_b32 s{S_DLT}, s{S_XD}, s{S_WD}"], f"s_add_u32 s{S_KR}, s{S_KR}, s{S_DLT}"]
def addr_add(): return [f"v_add_u32 v{r}, s{S_DLT}, v{r}" for r in range(V_KC, V_KC + 12)]
def qk(qt, s, b, c0=False):
    m = []
    for kt in range(2):
        d = vr(s + 4*kt, 4)
        for kk in range(4):
            c = ('0' if c0 else vr(V_NM + 4*qt, 4)) if kk == 0 else d
            m.append(f"{M16} {d}, {ar(A_K[b]+16*kt+4*kk,4)}, {ar(A_Q+16*qt+4*kk,4)}, {c}")
    return m
def pv(qt, s, b, c0=False):
    m = []
    for dt in range(8):
        d = vr(acc(qt, dt), 4)
        m.append(f"{M16} {d}, {ar(A_V[b]+4*dt,4)}, {vr(s,4)}, {'0' if c0 else d}")
    d = ar(A_L + 4*qt, 4)
    m.append(f"{M16} {d}, {ar(A_ONE,4)}, {vr(s,4)}, {'0' if c0 else d}")
    return m
def sm_ops(s):
    E = lambda i: f"v_exp_f32 v{s+i}, v{s+i}"
    C = lambda j: f"v_cvt_pk_bf16_f32 v{s+j}, v{s+2*j}, v{s+2*j+1}"
    return [(0, E(0)), (2, E(1)), (4, E(2)), (5, C(0)), (6, E(3)), (8, E(4)), (9, C(1)), (10, E(5)),
            (12, E(6)), (13, C(2)), (14, E(7)), (15, C(3))]

def block(p, cfg, b, last=False, extra=None):
    sb = lambda qt: V_S[(b + qt) & 1]
    m = qk(0, sb(0), b) + pv(4, V_S[b ^ 1], b ^ 1)
    for qt in range(1, 5): m += qk(qt, sb(qt), b) + pv(qt-1, sb(qt-1), b)
    s = Sched(m)
    s.put(-1, [f"s_waitcnt vmcnt({0 if last else cfg.a_vm}) lgkmcnt(0)", "s_barrier"])
    for g, op in sm_ops(V_S[b ^ 1]):
        if g >= 9: s.put(g - 9, op)
    tail = []
    for qt in range(5):
        for g, op in sm_ops(sb(qt)):
            gg = 17*qt + 8 + g
            if gg < 85: s.put(gg, op)
            else: tail.append(op)
    if not last:
        s.add(win(flat([kv_dyn(cfg, b)]), 0, cfg.a_hi), reach=4)
        if b == 1 and cfg.wo_pf: s.put(84, wo_pf(cfg))
        s.add(win(k_reads(b ^ 1), 0, 40)).add(win(v_reads(b ^ 1), 17, 72))
        if cfg.ring == 5:
            fl = addr_add()
            s.add(win(flat([ring5_step()]), 30, 42) + win(fl[:4], 44, 70) + win(fl[4:], 74, 84), reach=4)
        elif b == 0:
            fl = addr_flip()
            s.add(win(fl[:4], 44, 70) + win(fl[4:], 74, 84), reach=4)
    for e in extra or []: s.add(e, reach=4)
    run(p, cfg, f"block parity {b}{' last' if last else ''}", s)
    return tail

def conv(qt, kk):
    a = acc(qt, 2*kk)
    o = []
    for h in range(2):
        o += [f"v_mul_f32 v{a+4*h+j}, s{S_SCALE}, v{a+4*h+j}" for j in range(4)]
        o += [f"v_cvt_pk_bf16_f32 v{a+4*h+j}, v{a+4*h+2*j}, v{a+4*h+2*j+1}" for j in range(2)]
        o += [f"ds_write_b64 v{V_QW}, {vr(a+4*h,2)} offset:{(qt&3)*1024 + h*512}"]
    return o + [f"ds_read_b128 {ar(A_Q+16*qt+4*kk,4)}, v{V_QR} offset:{(qt&3)*1024}"]

def rowmax(qt, s):
    a, b = (V_T, V_T+1) if qt & 1 else (V_T+2, V_T+3)
    nm = V_NM + 4*qt
    o = [f"v_max3_f32 v{a}, v{s}, v{s+1}, v{s+2}", f"v_max3_f32 v{b}, v{s+3}, v{s+4}, v{s+5}",
         f"v_max3_f32 v{a}, v{a}, v{s+6}, v{s+7}", f"v_max3_f32 v{a}, v{a}, v{b}, v{V_MG+qt}",
         f"v_mov_b32 v{b}, v{a}", f"v_permlane16_swap_b32 v{a}, v{b}", f"v_max_f32 v{a}, v{a}, v{b}",
         f"v_mov_b32 v{b}, v{a}", f"v_permlane32_swap_b32 v{a}, v{b}", f"v_max_f32 v{a}, v{a}, v{b}"]
    o += [f"v_sub_f32 v{s+i}, v{s+i}, v{a}" for i in range(8)]
    o += [f"v_sub_f32 v{nm+i}, 0, v{a}" for i in range(4)]
    return o

def block0(p, cfg, with_conv):
    R5 = cfg.ring == 5
    p.e(f"s_mov_b32 s{S_NB}, {cfg.ring*8192}\ns_mov_b32 s{S_KD}, {RING[0]}\ns_mov_b32 s{S_PER}, 0\ns_mov_b32 s{S_SKIP}, {hex(skip_mask(cfg))}")
    if R5: p.e(f"s_mov_b32 s{S_KR}, {RING[1]}\ns_mov_b32 s{S_WD}, {32*KB}\ns_mov_b32 s{S_XD}, {(-128*KB) & 0xffffffff}\ns_mov_b32 s{S_DLT}, {32*KB}")
    p.e(f"s_waitcnt vmcnt({20 if R5 else 16}) lgkmcnt(0)\ns_barrier")
    if R5: emit(p, addr_add())
    m = []
    for qt in range(5): m += qk(qt, V_S0[qt], 0, c0=True)
    for qt in range(4): m += pv(qt, V_S0[qt], 0, c0=True)
    s = Sched(m)
    if with_conv:
        for qt in range(1, 5): s.add(win(conv(qt, 3), max(0, 8*qt - 12), 8*qt - 3), reach=1)
    if R5:
        s.put(36, ["s_barrier"])
        k4 = kv_static(cfg, 4)
        s.add(win([k4[0]] + k4[6:], 37, 48) + win(flat([kv_dyn(cfg, 0)]), 49, 75), reach=1)
    else:
        s.add(win(flat([kv_dyn(cfg, 0)]), 0, cfg.b0_hi))
    lo, hi = [10, 29, 41, 51, 61], [37, 46, 55, 64, 75]
    sm = []
    for qt in range(5):
        sm += win(rowmax(qt, V_S0[qt]) + [op for g, op in sm_ops(V_S0[qt]) if qt < 4 or g < 9], lo[qt], hi[qt])
    s.add(sm, reach=1)
    s.add(win(k_reads(1) + v_reads(1), 0, 60))
    s.add(win([f"v_mov_b64 {vr(acc(4,0)+2*i,2)}, 0" for i in range(16)] + [f"v_accvgpr_write_b32 a{A_L+16+i}, 0" for i in range(4)], 33, 75))
    s.add(win(flat([ring5_step()]) + addr_add() if R5 else addr_flip(), 62, 75))
    run(p, cfg, "block 0", s)

def phase1b(p, cfg):
    m = []
    for dt in range(1, 8): m += q_group(dt, 1)
    s = Sched(m)
    s.put(-1, ["s_waitcnt lgkmcnt(0)", "s_barrier"])
    s.put(30, ["s_waitcnt vmcnt(16)", "s_barrier"])
    s.add(win(flat([kv_static(cfg, 3) + (kv_static(cfg, 4)[:6] if cfg.ring == 5 else [])]), 0, cfg.ql_hi))
    cv = []
    for kk in range(3):
        cv += win(un([conv(qt, kk) for qt in range(5)]), 20*kk + 12, min(69, 20*kk + 34))
    s.add(cv, reach=1)
    s.add(win(k_reads(0) + v_reads(0), 31, 66))
    run(p, cfg, "q last", s)
    emit(p, conv(0, 3))
    stamp(p, cfg, "q_end")
    block0(p, cfg, True)
    stamp(p, cfg, "blk0_end")
    p.begin_loop()
    p.e("Lattn_loop:")
    block(p, cfg, 1)
    block(p, cfg, 0)
    stamp_dyn(p, cfg, [f"a{2*i+2}" for i in range(7)], [f"s_lshr_b32 s{S_T2}, s{S_PER}, 1", f"s_sub_u32 s{S_T2}, s{S_T2}, 1"])
    p.e(f"s_cmp_lt_u32 s{S_PER}, 15\ns_cbranch_scc1 Lattn_loop")
    p.end_loop()

def o_tile(cfg, qt, packed=False):
    r = V_T + 2*(qt & 1)
    o = [f"v_accvgpr_read_b32 v{r}, a{A_L+4*qt}", f"s_mov_b32 s{S_SOK}, {qt*131072}",
         f"v_max_u32 v{V_T+5}, v{V_T+5}, v{r}", f"v_rcp_f32 v{r}, v{r}"]
    for kk in range(4):
        a = acc(qt, 2*kk)
        if packed: o += [f"v_pk_mul_f32 {vr(a+2*j,2)}, {vr(a+2*j,2)}, {vr(r,2)} op_sel_hi:[1,0]" for j in range(4)]
        else: o += [f"v_mul_f32 v{a+j}, v{r}, v{a+j}" for j in range(8)]
        o += [f"v_cvt_pk_bf16_f32 v{a+j}, v{a+2*j}, v{a+2*j+1}" for j in range(4)]
        o += [f"buffer_store_dwordx4 {vr(a,4)}, v{V_OA}, {srd(SRD_OW)}, s{S_SOK} offen offset:{kk*1024}{cfg.o_store}"]
    return o

def sentinel(vf, va, so):
    o = srd_ex() + [f"v_mov_b32 v{vf+i}, -1" for i in range(4)] + \
        [f"s_lshl2_add_u32 s{S_T2}, s2, s{S_W}", f"s_mul_i32 s{S_T2}, s{S_T2}, {10*KB}", f"v_lshl_add_u32 v{va}, v0, 4, s{S_T2}"]
    for i in range(10):
        if i % 4 == 0: o.append(f"s_mov_b32 s{so}, {i*1024}")
        o.append(f"buffer_store_dwordx4 {vr(vf,4)}, v{va}, {srd(SRD_EX)}, s{so} offen offset:{(i&3)*1024} sc1")
    return o
def attn_end(p, cfg):
    T = V_T
    sent = srd_ex() if (cfg.sent_early or cfg.exch == 'flag') else sentinel(V2_F, V2_EI, S_SOX)
    side = []
    if cfg.fused:
        side += p2_srd_wo() + p2_setup_wo() + p2_rot(cfg) + p2_dma_w(cfg, 0) + p2_rot(cfg) + p2_dma_w(cfg, 1)
        side += [f"s_lshl3_add_u32 s{S_SOW}, s{S_BLK}, s{S_B}", f"s_lshl_b32 s{S_SOW}, s{S_SOW}, 4",
                 f"buffer_load_dwordx4 {vr(V2_G,4)}, off, {srd(SRD_DBG)}, s{S_SOW} sc1"]
    ex = [win(flat([side + sent]), 0, 60),
          win([f"v_mov_b32 v{T+5}, 0"], 0, 20) + win(o_tile(cfg, 0), 38, 62) + win(o_tile(cfg, 1), 62, 84)]
    tail = block(p, cfg, 1, last=True, extra=ex)
    t2 = o_tile(cfg, 2, True)
    k = 0
    for op in tail:
        emit(p, [op] + t2[k:k+4]); k += 4
    emit(p, t2[k:])
    s = Sched(pv(4, V_S[1], 1))
    s.add(win(o_tile(cfg, 3), 0, 8), reach=0)
    run(p, cfg, "last pv", s)
    stamp(p, cfg, "attn_end")
    emit(p, o_tile(cfg, 4, True))
    if cfg.fused and cfg.wo_pf_end: emit(p, wo_pf(cfg, True))
    lim = f32bits(L_LIMIT if not cfg.force_fallback else 1.0)
    p.e(f"""
    v_cmp_le_u32 vcc, {hex(lim)}, v{T+5}
    s_lshl_b32 s{S_T1}, s{S_W}, 2
    s_add_u32 s{S_T1}, s{S_T1}, {VOTE}
    v_mov_b32 v{T+1}, s{S_T1}
    s_cmp_lg_u64 vcc, 0
    s_cselect_b32 s{S_T0}, 1, 0
    v_mov_b32 v{T}, s{S_T0}
    ds_write_b32 v{T+1}, v{T}
    v_mov_b32 v{T+1}, {VOTE}
    s_waitcnt vmcnt(0) lgkmcnt(0)
    s_barrier
    ds_read_b128 v[28:31], v{T+1}
    v_or3_b32 v28, v28, v29, v30
    v_or_b32 v28, v28, v31
    v_readfirstlane_b32 s{S_T0}, v28
    s_andn2_b32 s{S_T0}, s{S_T0}, s{S_FB}
    s_cmp_lg_u32 s{S_T0}, 0
    s_cbranch_scc1 Lfallback
    """)
    stamp(p, cfg, "o_stored")

def fallback(cfg):
    p = Prog()
    p.e(f"Lfallback:\ns_mov_b32 s{S_FB}, 1\ns_mov_b32 s{S_SOK}, 0")
    emit(p, addr_flip("v_and_b32", "0xffff" if cfg.ring == 4 else "0x7fff"))
    p.begin_loop()
    p.e(f"Lfb_loop:\ns_barrier\ns_mov_b32 m0, s{S_KW}\ns_nop 0")
    for i in range(4): p.e(f"buffer_load_dwordx4 v{V_DK+i}, {srd(SRD_K)}, s{S_SOK} offen offset:{i*1024} lds")
    p.e("s_waitcnt vmcnt(0)\ns_barrier")
    emit(p, k_reads(0))
    for qt in range(5): emit(p, qk(qt, V_S0[qt], 0, c0=True))
    for qt in range(5):
        s_ = V_S0[qt]
        emit(p, [f"v_max3_f32 v{V_MG+qt}, v{V_MG+qt}, v{s_+2*i}, v{s_+2*i+1}" for i in range(4)])
    p.e(f"s_addk_i32 s{S_SOK}, 0x2000\ns_cmp_lt_u32 s{S_SOK}, 131072\ns_cbranch_scc1 Lfb_loop")
    p.end_loop()
    p.e("s_barrier")
    for j in range(4): emit(p, kv_static(cfg, j))
    if cfg.ring == 5: emit(p, kv_static(cfg, 4)[:6])
    emit(p, addr_flip("v_or_b32", hex(RING[0])))
    p.e(f"s_waitcnt vmcnt({28 if cfg.ring == 5 else 24})\ns_barrier")
    emit(p, k_reads(0) + v_reads(0))
    v = cfg.verbose; cfg.verbose = False
    block0(p, cfg, False)
    cfg.verbose = v
    p.e("s_branch Lattn_loop")
    return p

def phase1_srds(p, cfg):
    p.e(f"s_mul_i32 s{S_T0}, s{S_B}, 327680")
    mk_srd(p, SRD_X, 64, 65, f"s{S_T0}", 327680)
    p.e(f"s_lshl_b32 s{S_T0}, s{S_HP}, 9\ns_sub_u32 s{S_T1}, {1024*8192}, s{S_T0}")
    mk_srd(p, SRD_WQ, 70, 71, f"s{S_T0}", f"s{S_T1}")
def phase1_srds2(p, cfg):
    p.e(f"s_lshl4_add_u32 s{S_T0}, s{S_B}, s{S_HP}\ns_lshl_b32 s{S_T0}, s{S_T0}, 18")
    mk_srd(p, SRD_K, 66, 67, f"s{S_T0}", 262144)
    mk_srd(p, SRD_V, 68, 69, f"s{S_T0}", 262144)
    p.e(f"""
    s_mul_i32 s{S_T0}, s{S_BLK}, {WS_O_BLK}
    s_mul_i32 s{S_T1}, s{S_B}, {10*131072}
    s_add_u32 s{S_T0}, s{S_T0}, s{S_T1}
    s_lshl_b32 s{S_T1}, s{S_HP}, 13
    s_add_u32 s{S_T0}, s{S_T0}, s{S_T1}
    s_sub_u32 s{S_T1}, {10*131072}, s{S_T1}
    """)
    mk_srd(p, SRD_OW, 88, 89, f"s{S_T0}", f"s{S_T1}")
    p.e(f"s_mov_b32 s{S_SCALE}, {hex(f32bits(QSCALE))}\ns_mov_b32 s{S_FB}, 0")
def own_line(v, mask=48):
    return [f"s_lshl_b32 s{S_T0}, s2, 7", f"v_lshl_add_u32 v{v}, v0, 2, s{S_T0}", f"v_and_b32 v{v+1}, {mask}, v0",
            f"v_lshl_add_u32 v{v}, v{v+1}, 24, v{v}"]
def flag_clear(p, cfg):
    T = V_T
    p.e(f"s_mov_b32 s{S_T1}, {WS_FL}")
    mk_srd(p, SRD_EX, 88, 89, f"s{S_T1}", 256*128)
    mk_srd(p, SRD_DBG, 86, 87, None, 256)
    emit(p, own_line(T, 32) + [f"s_cmp_eq_u32 s{S_W}, 0", f"s_cselect_b32 s{S_W0}, 0, 0x40000000", f"v_mov_b32 v{T+2}, 0",
                           f"buffer_store_dword v{T+2}, v{T}, {srd(SRD_EX)}, s{S_W0} offen sc1"])
def flag_cleared(p, cfg):
    T = V_T
    p.e(f"""
    s_lshl3_add_u32 s{S_T0}, s{S_BLK}, s{S_B}
    s_lshl4_add_u32 s{S_T0}, s{S_T0}, s{S_HP}
    v_lshl_add_u32 v{T}, v0, 24, s{S_T0}
    v_mov_b32 v{T+1}, 1
    buffer_store_byte v{T+1}, v{T}, {srd(SRD_DBG)}, s{S_W0} offen sc1
    """)
def srd_ex(): return [f"s_mov_b32 s{S_T2}, {WS_EX}"] + srd_lines(SRD_EX, 88, 89, f"s{S_T2}", 256*40*KB)

V2_DW, V2_DX, V2_WC, V2_XC = 228, 232, 237, 241
V2_EI, V2_EO, V2_OUT, V2_F, V2_G = 243, 244, 245, 248, 232
P2_FA = 0
P2_FB = [32, 72]
def acc2(mt, v): return ACC + 16*mt + 4*v

def p2_srd_wo():
    return [f"s_lshl_b32 s{S_T0}, s{S_KH}, 22", f"s_lshl_b32 s{S_T1}, s{S_NT}, 8", f"s_add_u32 s{S_T0}, s{S_T0}, s{S_T1}",
            f"s_sub_u32 s{S_T1}, {2048*2048}, s{S_T1}"] + srd_lines(SRD_WO, 72, 73, f"s{S_T0}", f"s{S_T1}")
def p2_setup_wo():
    a, b = V2_DW, V2_DW + 1
    o = [f"v_lshrrev_b32 v{a}, 4, v0", f"v_lshlrev_b32 v{b}, 1, v{a}", f"v_xor_b32 v{b}, v{b}, v0", f"v_and_b32 v{b}, 15, v{b}",
         f"s_lshl_b32 s{S_T0}, s{S_W}, 15", f"v_lshl_add_u32 v{a}, v{a}, 11, s{S_T0}", f"v_lshl_add_u32 v{a}, v{b}, 4, v{a}",
         f"v_xor_b32 v{b}, 128, v{a}", f"v_add_u32 v{a+2}, {2*7168}, v{a}", f"v_add_u32 v{a+3}, {3*7168}, v{b}", f"v_add_u32 v{b}, 7168, v{b}"]
    return o + [f"s_mov_b32 s{S_STEP}, 0", f"s_lshl1_add_u32 s{S_PHI}, s{S_NT}, s{S_B}"]
def p2_setup_rest():
    T = V_T
    o = [f"s_mul_i32 s{S_T0}, s{S_BLK}, {WS_O_BLK}", f"s_mul_i32 s{S_T1}, s{S_B}, {10*131072}", f"s_add_u32 s{S_T0}, s{S_T0}, s{S_T1}",
         f"s_lshl_b32 s{S_T1}, s{S_KH}, 16", f"s_add_u32 s{S_T0}, s{S_T0}, s{S_T1}", f"s_sub_u32 s{S_T1}, {10*131072}, s{S_T1}"]
    o += srd_lines(SRD_OR, 88, 89, f"s{S_T0}", f"s{S_T1}")
    o += [f"s_mul_i32 s{S_T0}, s{S_B}, {160*4096}", f"s_lshl_b32 s{S_T1}, s{S_BLK}, 11", f"s_lshl_b32 s{S_T2}, s{S_NT}, 8",
          f"s_add_u32 s{S_T1}, s{S_T1}, s{S_T2}", f"s_add_u32 s{S_T0}, s{S_T0}, s{S_T1}", f"s_sub_u32 s{S_T1}, {160*4096}, s{S_T1}"]
    o += srd_lines(SRD_OUT, 84, 85, f"s{S_T0}", f"s{S_T1}")
    o += [f"v_lshlrev_b32 v{T}, 4, v0", f"s_mul_i32 s{S_T0}, s{S_W}, 5", f"s_mul_i32 s{S_XW}, s{S_W}, {5*KB}"]
    for i in range(5):
        o += [f"s_add_u32 s{S_T1}, s{S_T0}, {i}", f"s_lshr_b32 s{S_T2}, s{S_T1}, 1", f"s_lshl_b32 s{S_T2}, s{S_T2}, 7",
              f"s_and_b32 s{S_T1}, s{S_T1}, 1", f"s_add_u32 s{S_T1}, s{S_T1}, s{S_T2}", f"s_sub_u32 s{S_T1}, s{S_T1}, {i&3}",
              f"s_lshl_b32 s{S_T1}, s{S_T1}, 10", f"v_add_u32 v{V2_DX+i}, s{S_T1}, v{T}"]
    o += [f"s_mul_i32 s{S_T0}, s{S_HH}, {10*KB}", f"s_add_u32 s{S_T0}, s{S_T0}, {P2X}", f"v_add_u32 v{V2_XC}, s{S_T0}, v{T}",
          f"v_add_u32 v{V2_XC+1}, {40*KB}, v{V2_XC}",
          f"s_xor_b32 s{S_T0}, s2, 2", f"s_lshl2_add_u32 s{S_T0}, s{S_T0}, s{S_W}", f"s_mul_i32 s{S_T0}, s{S_T0}, {10*KB}",
          f"v_add_u32 v{V2_EO}, s{S_T0}, v{T}",
          f"s_lshl2_add_u32 s{S_T0}, s2, s{S_W}", f"s_mul_i32 s{S_T0}, s{S_T0}, {10*KB}", f"v_add_u32 v{V2_EI}, s{S_T0}, v{T}",
          f"v_lshrrev_b32 v{T}, 2, v0", f"v_and_b32 v{T+1}, 7, v{T}", f"v_lshlrev_b32 v{T}, 8, v{T}", f"v_and_b32 v{T+2}, 3, v0",
          f"v_lshl_add_u32 v{T}, v{T+2}, 3, v{T}", f"s_lshl_b32 s{S_T0}, s{S_P}, 2", f"s_lshl1_add_u32 s{S_T0}, s{S_KH}, s{S_T0}",
          f"v_xor_b32 v{T+1}, s{S_T0}, v{T+1}", f"v_lshl_add_u32 v{V2_WC}, v{T+1}, 5, v{T}"]
    o += [f"v_xor_b32 v{V2_WC+v}, {32*v}, v{V2_WC}" for v in range(1, 4)]
    o += [f"v_and_b32 v{T}, 15, v0", f"s_mul_i32 s{S_T0}, s{S_HH}, {80*4096}", f"s_lshl_b32 s{S_T1}, s{S_P}, 7",
          f"s_add_u32 s{S_T0}, s{S_T0}, s{S_T1}", f"s_lshl_b32 s{S_T1}, s{S_KH}, 6", f"s_add_u32 s{S_T0}, s{S_T0}, s{S_T1}",
          f"v_lshl_add_u32 v{T}, v{T}, 12, s{S_T0}", f"v_bfe_u32 v{T+1}, v0, 4, 1", f"v_lshl_add_u32 v{T}, v{T+1}, 5, v{T}",
          f"v_lshrrev_b32 v{T+1}, 5, v0", f"v_lshl_add_u32 v{V2_OUT}, v{T+1}, 4, v{T}"]
    o += [f"v_mov_b64 {vr(ACC+2*i,2)}, 0" for i in range(40)]
    return o

def p2_rot(cfg): return rot(cfg.rot2, [(S_SOX, 11), (S_SOW, 17)])
def p2_dma_w(cfg, sl): return dma_run(V2_DW, 4, SRD_WO, S_SOW, lambda k: f"s_add_u32 m0, s{S_KW}, {P2W + sl*16*KB}", cfg.f_wo)
def p2_dma_x(cfg, sl): return dma_run(V2_DX, 5, SRD_OR, S_SOX, lambda k: f"s_add_u32 m0, s{S_XW}, {P2X + sl*20*KB + k*4096}", cfg.o_load)
def p2_rd_a(v, sl):
    return [f"ds_read_b64_tr_b16 {ar(P2_FA+8*v+4*kk+2*j,2)}, v{V2_WC+v} offset:{P2W + sl*16*KB + (kk*32+j*16)*256}" for kk in range(2) for j in range(2)]
def p2_rd_b(buf, sl):
    return [f"ds_read_b128 {ar(P2_FB[buf]+8*mt+4*kk,4)}, v{V2_XC+(sl>>1)} offset:{(sl&1)*20*KB + mt*2048 + kk*1024}" for mt in range(5) for kk in range(2)]
def p2_group(v, buf):
    m = []
    for mt in range(5):
        d = vr(acc2(mt, v), 4)
        m += [f"{M16} {d}, {ar(P2_FA+8*v+4*kk,4)}, {ar(P2_FB[buf]+8*mt+4*kk,4)}, {d}" for kk in range(2)]
    return m
def p2_period(p, cfg, st, dma, vm):
    buf, nx = st & 1, (st + 1) & 3
    s = Sched(p2_group(1, buf) + p2_group(2, buf) + p2_group(3, buf) + p2_group(0, buf ^ 1))
    s.put(-1, [f"s_waitcnt vmcnt({vm}) lgkmcnt(0)", "s_barrier"])
    if dma: s.add(win(flat([p2_rot(cfg)]), 0, 2) + win(p2_dma_w(cfg, st & 3) + p2_dma_x(cfg, st & 3), 2, 39), reach=2)
    seq = []
    for v in range(4): seq += win(p2_rd_a(v, nx), 10*v, 10*v + (9 if v < 3 else 5))
    s.add(seq, reach=2).add(win(p2_rd_b(buf ^ 1, nx), 0, 24), reach=2)
    run(p, cfg, "p2 period", s)

def phase2(p, cfg):
    if cfg.fused:
        T = V_T
        sl = f"s_sleep {cfg.poll_sleep}" if cfg.poll_sleep else ""
        p.e(f"s_mov_b32 s{S_T1}, {WS_FL}")
        mk_srd(p, SRD_FL, 88, 89, f"s{S_T1}", 256*128)
        p.e(f"""
        s_cmp_lg_u32 s{S_W}, 0
        s_cbranch_scc1 Lpub_done
        s_mov_b32 s{S_SPIN}, {SPIN_MAX}
        s_branch Lini_test
        Lini_poll:
        buffer_load_dwordx4 {vr(V2_G,4)}, off, {srd(SRD_DBG)}, s{S_SOW} sc1
        s_waitcnt vmcnt(0)
        Lini_test:
        v_and_b32 v{T}, v{V2_G}, v{V2_G+1}
        v_and_b32 v{T+1}, v{V2_G+2}, v{V2_G+3}
        v_and_b32 v{T}, v{T}, v{T+1}
        s_sub_u32 s{S_SPIN}, s{S_SPIN}, 1
        s_cbranch_scc1 Lini_done
        v_readfirstlane_b32 s{S_T0}, v{T}
        s_nop 1
        s_cmp_lg_u32 s{S_T0}, 0x01010101
        s_cbranch_scc1 Lini_poll
        Lini_done:
        v_and_b32 v{T}, 3, v0
        v_bfe_u32 v{T+1}, v0, 2, 2
        v_lshl_add_u32 v{T}, v{T}, 3, v{T+1}
        s_lshl_b32 s{S_T0}, s{S_B}, 5
        s_lshl2_add_u32 s{S_T0}, s{S_BLK}, s{S_T0}
        s_lshl_b32 s{S_T0}, s{S_T0}, 5
        s_add_u32 s{S_T0}, s{S_T0}, s{S_HP}
        s_lshl_b32 s{S_T0}, s{S_T0}, 2
        v_lshl_add_u32 v{T}, v{T}, 7, s{S_T0}
        v_and_b32 v{T+1}, 48, v0
        v_lshl_add_u32 v{T}, v{T+1}, 24, v{T}
        v_mov_b32 v{T+1}, 1
        buffer_store_dword v{T+1}, v{T}, {srd(SRD_FL)}, 0 offen sc1
        Lpub_done:
        """)
        emit(p, p2_setup_rest())
        emit(p, own_line(T + 2))
        P = T + 2
        test = [f"buffer_load_dword v{P+2}, v{P}, {srd(SRD_FL)}, 0 offen sc1", "s_waitcnt vmcnt(0)", f"v_cmp_eq_u32 vcc, 1, v{P+2}",
                "s_nop 4", "s_cmp_eq_u32 vcc_lo, 0xffff", "s_cbranch_scc1 Lpoll_done"]
        if cfg.wo_pf_poll:
            emit(p, test + wo_pf(cfg, True))
        p.e(f"""
        s_cmp_lg_u32 s{S_W}, 0
        s_cbranch_scc1 Lpoll_done
        s_mov_b32 s{S_SPIN}, {SPIN_MAX}
        Lpoll:
        """)
        emit(p, test)
        p.e(f"""
        {sl}
        s_sub_u32 s{S_SPIN}, s{S_SPIN}, 1
        s_cbranch_scc0 Lpoll
        Lpoll_done:
        s_barrier
        """)
        stamp(p, cfg, "polled")
        p.e(f"s_mov_b32 s{S_STEP}, 0")
        emit(p, p2_rot(cfg) + p2_dma_x(cfg, 0) + p2_rot(cfg) + p2_dma_x(cfg, 1))
        p.e("s_waitcnt vmcnt(5)\ns_barrier")
    else:
        emit(p, p2_srd_wo() + p2_setup_wo() + p2_rot(cfg) + p2_dma_w(cfg, 0) + srd_ex() + p2_setup_rest() + p2_dma_x(cfg, 0))
        emit(p, p2_rot(cfg) + p2_dma_w(cfg, 1) + p2_dma_x(cfg, 1))
        p.e("s_waitcnt vmcnt(9)\ns_barrier")
    stamp(p, cfg, "p2_first")
    rb = p2_rd_b(0, 0)
    emit(p, rb[:2] + p2_rd_a(0, 0) + rb[2:] + p2_rd_a(1, 0) + p2_rd_a(2, 0) + p2_rd_a(3, 0))
    emit(p, p2_rot(cfg) + p2_dma_w(cfg, 2) + p2_dma_x(cfg, 2))
    s = Sched(p2_group(0, 0))
    emit(p, p2_rot(cfg))
    s.add(win(p2_dma_w(cfg, 3) + p2_dma_x(cfg, 3), 0, 9), reach=0)
    run(p, cfg, "p2 group 0", s)
    p.begin_loop()
    p.e("Lp2_loop:")
    for st in range(4): p2_period(p, cfg, st, True, 18)
    p.e(f"s_cmp_lt_u32 s{S_STEP}, 32\ns_cbranch_scc1 Lp2_loop")
    p.end_loop()
    p2_period(p, cfg, 0, False, 18)
    p2_period(p, cfg, 1, False, 9)
    p2_period(p, cfg, 2, False, 0)
    s = Sched(p2_group(2, 1) + p2_group(3, 1) + p2_group(1, 1))
    def send(v):
        o = []
        for mt in range(5):
            i = 2*mt + v - 2
            o += [f"s_mov_b32 s{S_SOX}, {(i >> 2)*4096}",
                  f"buffer_store_dwordx4 {vr(acc2(mt, v),4)}, v{V2_EO}, {srd(SRD_EX)}, s{S_SOX} offen offset:{(i&3)*1024} sc1"]
        return o
    s.add(win(send(2), 10, 19) + win(send(3), 20, 29), reach=0)
    run(p, cfg, "p2 last", s)
    stamp(p, cfg, "p2_mfma_end")
    R = 112
    loads = []
    for i in range(10):
        if i % 4 == 0: loads.append(f"s_mov_b32 s{S_SOX}, {i*1024}")
        loads.append(f"buffer_load_dwordx4 {vr(R+4*i,4)}, v{V2_EI}, {srd(SRD_EX)}, s{S_SOX} offen offset:{(i&3)*1024} sc1")
    if cfg.exch == 'flag':
        T = V_T
        p.e(f"""
        s_lshl_b32 s{S_T0}, s{S_W}, 2
        s_add_u32 s{S_T0}, s{S_T0}, 64
        s_lshl_b32 s{S_T1}, s2, 7
        s_add_u32 s{S_T0}, s{S_T0}, s{S_T1}
        s_xor_b32 s{S_T1}, s{S_T0}, 256
        v_lshl_add_u32 v{T}, v0, 24, s{S_T1}
        v_mov_b32 v{T+1}, 1
        s_mov_b32 s{S_SPIN}, {SPIN_MAX}
        s_waitcnt vmcnt(0)
        buffer_store_dword v{T+1}, v{T}, {srd(SRD_FL)}, 0 offen sc1
        Lex_poll:
        buffer_load_dword v{T+2}, off, {srd(SRD_FL)}, s{S_T0} sc1
        s_sub_u32 s{S_SPIN}, s{S_SPIN}, 1
        s_cbranch_scc1 Lex_done
        s_waitcnt vmcnt(0)
        v_readfirstlane_b32 s{S_T1}, v{T+2}
        s_nop 1
        s_cmp_lg_u32 s{S_T1}, 1
        s_cbranch_scc1 Lex_poll
        Lex_done:
        """)
        emit(p, loads)
        p.e("s_waitcnt vmcnt(0)")
    else:
        p.e(f"s_mov_b32 s{S_SPIN}, {SPIN_MAX}\nLex_poll:")
        emit(p, loads)
        p.e(f"s_sub_u32 s{S_SPIN}, s{S_SPIN}, 1\ns_cbranch_scc1 Lex_done\ns_waitcnt vmcnt(0)")
        p.e(f"v_max_u32 v{V_T}, v{R}, v{R+1}")
        for i in range(1, 20): p.e(f"v_max3_u32 v{V_T}, v{V_T}, v{R+2*i}, v{R+2*i+1}")
        p.e(f"v_cmp_eq_u32 vcc, -1, v{V_T}\ns_nop 4\ns_cbranch_vccnz Lex_poll\nLex_done:\ns_waitcnt vmcnt(0)")
    stamp(p, cfg, "p2_exch")
    for mt in range(5):
        a = acc2(mt, 0)
        o = [f"v_pk_add_f32 {vr(a+2*j,2)}, {vr(a+2*j,2)}, {vr(R+8*mt+2*j,2)}" for j in range(4)]
        o += [f"v_cvt_pk_bf16_f32 v{a+j}, v{a+2*j}, v{a+2*j+1}" for j in range(4)]
        o += [f"s_mov_b32 s{S_T0}, {mt*65536}", f"v_permlane16_swap_b32 v{a}, v{a+2}", f"v_permlane16_swap_b32 v{a+1}, v{a+3}",
              f"buffer_store_dwordx4 {vr(a,4)}, v{V2_OUT}, {srd(SRD_OUT)}, s{S_T0} offen"]
        emit(p, o)
    stamp(p, cfg, "p2_end")

def kernel1(cfg):
    p = Prog()
    entry(p, cfg, "Lexit1")
    stamp(p, cfg, "start")
    q_setup_dma(p)
    p.e("s_waitcnt lgkmcnt(0)")
    select_ptrs(p)
    phase1_srds(p, cfg)
    phase1a(p, cfg)
    phase1b(p, cfg)
    attn_end(p, cfg)
    if cfg.fused: phase2(p, cfg)
    stamp_flush(p, cfg, 0)
    p.e("Lexit1:\ns_endpgm")
    return [p, fallback(cfg)]

def kernel2(cfg):
    p = Prog()
    entry(p, cfg, "Lexit2")
    stamp(p, cfg, "k2_start")
    p.e(f"s_lshl_b32 s{S_KW}, s{S_W}, 12\ns_waitcnt lgkmcnt(0)")
    select_ptrs(p)
    phase2(p, cfg)
    stamp_flush(p, cfg, 1)
    p.e("Lexit2:\ns_endpgm")
    return [p]

def descriptor(name):
    return f""".section .rodata,"a"
.p2align 6
.amdhsa_kernel {name}
  .amdhsa_next_free_vgpr 512
  .amdhsa_next_free_sgpr 102
  .amdhsa_accum_offset 256
  .amdhsa_group_segment_fixed_size 0
  .amdhsa_kernarg_size 104
  .amdhsa_user_sgpr_count 2
  .amdhsa_user_sgpr_kernarg_segment_ptr 1
  .amdhsa_system_sgpr_workgroup_id_x 1
.end_amdhsa_kernel
"""
def build(cfg):
    global WSLOT, RING, QSCR, VOTE
    if cfg.ring == 5:
        WSLOT[:] = [0, 32*KB, 64*KB]; RING[:] = [32*KB, 64*KB, 96*KB, 128*KB, 0]; QSCR = 16*KB
    ref = open(f"cdna_kernels/{NAME}.s.ref").read().split("\n")
    head = [l for l in ref if l.startswith(";") and "@launch" not in l and not l.startswith("; Override") and not l.startswith("; grid=")]
    ks = [(NAME + "_kernel", kernel1(cfg))] if cfg.fused else [("attn_kernel", kernel1(cfg)), ("oproj_kernel", kernel2(cfg))]
    out = "\n".join(head) + "\n"
    for n, _ in ks:
        out += f"; @launch {'' if cfg.fused else 'kernel=' + n + ' '}grid=(256,1,1) block=(256,1,1) lds={LDS_BYTES}\n"
    if cfg.stamps: out += "; stamps: " + ",".join(STAMPS) + "\n"
    out += '.amdgcn_target "amdgcn-amd-amdhsa--gfx950"\n'
    def text(n, ps):
        o = ""
        for p in ps:
            p.insert_lgkm_waits()
            pad = p.hazards()
            if cfg.verbose: print(f"{n}: {sum(len(i) for _, i in p.segs)} lines, nop pad {pad}", file=sys.stderr)
            o += p.text()
        return o
    for n, ps in ks:
        out += f".text\n.globl {n}\n.p2align 8\n.type {n},@function\n{n}:\n"
        if cfg.alt:
            import copy, re
            c2 = copy.copy(cfg)
            for k, v in cfg.alt.items(): setattr(c2, k, v)
            STAMPS.clear()
            t2 = re.sub(r"\b(L[a-z]\w*)", r"\1_b", text(n, kernel1(c2)))
            out += "    s_bitcmp1_b32 s2, 2\n    s_cbranch_scc1 Lalt\n" + text(n, ps) + ".p2align 6\nLalt:\n" + t2
        else:
            out += text(n, ps)
    for n, _ in ks: out += descriptor(n)
    return out

if __name__ == "__main__":
    cfg = Cfg()
    outp = f"cdna_kernels/{NAME}.s"
    for a in sys.argv[1:]:
        if a.startswith("-o="): outp = a[3:]; continue
        k, v = a.split("=", 1)
        assert hasattr(cfg, k), k
        setattr(cfg, k, eval(v))
    open(outp, "w").write(build(cfg))
```

```python
import sys, math, struct, re
from asmir import Prog, Ins
from sched import Sched, flat, win

NAME = "concat_heads__mha_block_cached__mha_block_cached__near_ridge"
KB = 1024
M16 = "v_mfma_f32_16x16x32_bf16"

class Cfg:
    fused = True
    stamps = False
    f_kv = " nt"
    f_xw = ""
    f_wo = ""
    o_store = " sc1"
    o_load = " sc1"
    rot1 = 4
    rot2 = 4
    force_fallback = False
    poll_sleep = 4
    ex_lo = 125
    ring = 4
    tlb = None
    thr = 6
    thr_q = None
    p2_setup_per = 5
    exch = 'flag'
    sent_early = False
    wo_pf_end = False
    wo_pf_at = 'stores'
    wo_pf_poll = False
    ql_hi = 20
    b0_hi = 60
    kv_phase = None
    hp_swap = False
    q_sh = 2
    p_sh = 1
    ex_bf16 = True
    phi2 = False
    late_setup = True
    skip = 4
    a_vm = 8
    a_hi = 80
    pf_mask = 0
    pf_spread = 1
    pf_fl = ""
    wo_pf = None
    verbose = True
    loop_stamps = False
    alt = None

S_W, S_P, S_HH = 4, 5, 6
SRD_X, SRD_WQ, SRD_K, SRD_V, SRD_OW, SRD_WO, SRD_OUT, SRD_DBG, SRD_OR, SRD_TS = 8, 12, 16, 20, 24, 28, 32, 36, 40, 44
S_BLK, S_B, S_HP, S_KH, S_NT = 48, 49, 50, 51, 52
S_STEP, S_PHI, S_SOX, S_SOW = 53, 54, 55, 56
S_WR, S_XR, S_WD, S_XD = 57, 58, 59, 60
S_T0, S_T1, S_T2 = 61, 62, 63
S_SCALE = 74
SRD_EX = 76
S_NB, S_KD, S_SPIN, S_W0 = 80, 81, 82, 83
S_SKIP, S_PER, S_PFM, S_PFO = 3, 7, 93, 75
S_KR, S_DLT = 57, 58
S_SO2, S_NEED, S_OWN = 72 + 28, 72 + 29, 53 + 40
SRD_PF = 40
V_PF = 225
SRD_FL = 44
S_XW, S_WW, S_SOK, S_FB, S_KW = 90, 91, 92, 94, 95
S_TS = 96

def srd(n): return f"s[{n}:{n+3}]"
def vr(a, n): return f"v[{a}:{a+n-1}]" if n > 1 else f"v{a}"
def ar(a, n): return f"a[{a}:{a+n-1}]" if n > 1 else f"a{a}"
def f32bits(x): return struct.unpack("<I", struct.pack("<f", x))[0]

WSLOT = [32*KB, 64*KB, 0]
XSLOT = [136*KB, 96*KB, 116*KB]
RING = [64*KB, 96*KB, 0, 32*KB]
QSCR = 128*KB
VOTE = 159*KB
P2W, P2X = 0, 64*KB
LDS_BYTES = 160*KB

WS_O_BLK = 80*128*KB
WS_EX = 32*KB*KB
WS_FL = 48*KB*KB
WS_TS = 128*KB*KB
QSCALE = (128 ** -0.5) * math.log2(math.e)
L_LIMIT = 2.0 ** 24
SPIN_MAX = 1 << 15

STAMPS = []
def stamp(p, cfg, name):
    if not cfg.stamps: return
    idx = len(STAMPS); STAMPS.append(name)
    p.e(f"""
    s_memrealtime s[{S_TS}:{S_TS+1}]
    s_memtime s[{S_TS+2}:{S_TS+3}]
    s_waitcnt lgkmcnt(0)
    v_writelane_b32 v255, s{S_TS}, {2*idx}
    v_writelane_b32 v255, s{S_TS+2}, {2*idx+1}
    """)
def stamp_dyn(p, cfg, names, idx_lines):
    if not (cfg.stamps and cfg.loop_stamps): return
    base = len(STAMPS); STAMPS.extend(names)
    emit(p, [f"s_memrealtime s[{S_TS}:{S_TS+1}]", f"s_memtime s[{S_TS+2}:{S_TS+3}]"] + idx_lines +
            [f"s_lshl1_add_u32 m0, s{S_T2}, {2*base}", "s_waitcnt lgkmcnt(0)", f"v_writelane_b32 v255, s{S_TS}, m0",
             "s_add_u32 m0, m0, 1", "s_nop 0", f"v_writelane_b32 v255, s{S_TS+2}, m0"])
def stamp_flush(p, cfg, which):
    if not cfg.stamps: return
    p.e(f"s_mov_b32 s{S_T0}, {WS_TS}")
    mk_srd(p, SRD_TS, 88, 89, f"s{S_T0}", 1 << 20)
    p.e(f"""
    s_getreg_b32 s{S_TS}, hwreg(HW_REG_XCC_ID)
    s_nop 0
    v_writelane_b32 v255, s{S_TS}, 63
    v_lshlrev_b32 v254, 2, v0
    s_lshl_b32 s{S_TS}, s2, 2
    s_add_u32 s{S_TS}, s{S_TS}, s{S_W}
    s_lshl_b32 s{S_TS}, s{S_TS}, 8
    s_add_u32 s{S_TS}, s{S_TS}, {which*256*4*256}
    s_nop 0
    buffer_store_dword v255, v254, {srd(SRD_TS)}, s{S_TS} offen
    """)

def srd_lines(n, lo, hi, off, size):
    l = [f"s_mov_b32 s{n}, s{lo}", f"s_mov_b32 s{n+1}, s{hi}"] if off is None else \
        [[f"s_add_u32 s{n}, s{lo}, {off}", f"s_addc_u32 s{n+1}, s{hi}, 0"]]
    return l + [f"s_mov_b32 s{n+2}, {size}", f"s_mov_b32 s{n+3}, 0x20000"]
def un(l):
    o = []
    for x in l: o += un(x) if isinstance(x, list) else [x]
    return o
def emit(p, l): p.e("\n".join(un(l)))
def mk_srd(p, n, lo, hi, off, size): emit(p, srd_lines(n, lo, hi, off, size))
def run(p, cfg, name, s):
    if cfg.verbose: print(f"   {name}: {len(s.m)} mfma, estimate {s.est()} cycles", file=sys.stderr)
    emit(p, s.lines())

def entry(p, cfg, label_exit):
    p.e(f"""
    s_cmp_ge_u32 s2, 256
    s_cbranch_scc1 {label_exit}
    s_load_dwordx16 s[64:79], s[0:1], 0
    s_load_dwordx8 s[80:87], s[0:1], 64
    s_load_dwordx2 s[88:89], s[0:1], 96
    v_lshrrev_b32 v1, 6, v0
    v_and_b32 v0, 63, v0
    v_readfirstlane_b32 s{S_W}, v1
    s_bfe_u32 s{S_BLK}, s2, 0x10002
    s_lshr_b32 s{S_B}, s2, 5
    s_and_b32 s{S_HP}, s2, 3
    s_lshl_b32 s{S_HP}, s{S_HP}, 2
    s_bfe_u32 s{S_T2}, s2, 0x20003
    s_add_u32 s{S_HP}, s{S_HP}, s{S_T2}
    s_and_b32 s{S_P}, s{S_W}, 1
    s_lshr_b32 s{S_HH}, s{S_W}, 1
    s_lshr_b32 s{S_KH}, s{S_HP}, 3
    s_and_b32 s{S_NT}, s{S_HP}, 7
    """)
def select_ptrs(p):
    p.e(f"s_cmp_eq_u32 s{S_BLK}, 0")
    for i in range(5): p.e(f"s_cselect_b64 s[{64+2*i}:{65+2*i}], s[{64+2*i}:{65+2*i}], s[{74+2*i}:{75+2*i}]")

V_T = 26
ACC = 32
def acc(qt, dt): return ACC + 32*qt + 4*dt

def rot(C, shifts):
    if C == 1:
        l = []; src = S_STEP
    else:
        l = [f"s_add_u32 s{S_T0}, s{S_STEP}, s{S_PHI}", f"s_xor_b32 s{S_T0}, s{S_T0}, s{S_STEP}",
             f"s_and_b32 s{S_T0}, s{S_T0}, {C-1}", f"s_xor_b32 s{S_T0}, s{S_T0}, s{S_STEP}"]
        src = S_T0
    l += [f"s_lshl_b32 s{r}, s{src}, {sh}" for r, sh in shifts]
    return l + [f"s_add_u32 s{S_STEP}, s{S_STEP}, 1"]

def dma_run(vo, n, sr, so, m0, fl):
    g = []
    for i in range(n):
        if i % 4 == 0: g.append(m0(i >> 2))
        g.append(f"buffer_load_dwordx4 v{vo+i}, {srd(sr)}, s{so} offen offset:{(i&3)*1024}{fl} lds")
    return g

V_DX, V_DW = 192, 197
V_XC, V_WC = 205, 207
V_XL, V_WL = 215, 217
A_FA = 0
A_FB = [104, 64]

def q_dma(cfg):
    return dma_run(V_DW, 8, SRD_WQ, S_SOW, lambda k: f"s_add_u32 m0, s{S_WD}, {k*4096}", cfg.f_xw) + \
           dma_run(V_DX, 5, SRD_X, S_SOX, lambda k: f"s_add_u32 m0, s{S_XD}, {k*4096}", cfg.f_xw)
def q_rot(cfg): return rot(cfg.rot1, [(S_SOX, 7), (S_SOW, 19)])
def q_rd_a(dt):
    return [f"ds_read_b64_tr_b16 {ar(A_FA+8*dt+4*kk+2*j,2)}, v{V_WC+dt} offset:{(kk*32+j*4)*512}" for kk in range(2) for j in range(2)]
def q_rd_b(buf):
    return [f"ds_read_b128 {ar(A_FB[buf]+8*qt+4*kk,4)}, v{V_XC+kk} offset:{qt*2048}" for qt in range(5) for kk in range(2)]
def q_group(dt, buf):
    m = []
    for qt in range(5):
        d = vr(acc(qt, dt), 4)
        m += [f"{M16} {d}, {ar(A_FA+8*dt+4*kk,4)}, {ar(A_FB[buf]+8*qt+4*kk,4)}, {d}" for kk in range(2)]
    return m
def slot_rotate(reg, seq):
    lo, hi = min(seq), max(seq)
    return [f"s_add_u32 s{reg}, s{reg}, {(hi - lo)//2}", f"s_cmp_gt_u32 s{reg}, {hi}", f"s_cselect_b32 s{reg}, {lo}, s{reg}"]

def q_setup_dma(p):
    T = V_T
    p.e(f"""
    v_lshrrev_b32 v{T}, 3, v0
    v_lshrrev_b32 v{T+1}, 4, v0
    v_xor_b32 v{T+1}, v{T+1}, v0
    v_and_b32 v{T+1}, 7, v{T+1}
    v_lshlrev_b32 v{T}, 11, v{T}
    v_lshl_add_u32 v{T}, v{T+1}, 4, v{T}
    s_mul_i32 s{S_T0}, s{S_W}, {40*2048}
    s_lshl_b32 s{S_T1}, s{S_P}, 6
    v_xor_b32 v{T}, s{S_T1}, v{T}
    v_add_u32 v{V_DX}, s{S_T0}, v{T}
    v_xor_b32 v{T+1}, 64, v{V_DX}
    """)
    for i in range(1, 5): p.e(f"v_add_u32 v{V_DX+i}, {8*i*2048 - (i&3)*1024}, v{T+1 if i & 1 else V_DX}")
    p.e(f"""
    v_lshrrev_b32 v{T}, 5, v0
    v_and_b32 v{T+1}, 31, v0
    v_lshlrev_b32 v{T+2}, 1, v{T}
    v_xor_b32 v{T+1}, v{T+1}, v{T+2}
    v_lshlrev_b32 v{T}, 13, v{T}
    v_lshl_add_u32 v{T}, v{T+1}, 4, v{T}
    s_lshl_b32 s{S_T0}, s{S_W}, 17
    v_add_u32 v{V_DW}, s{S_T0}, v{T}
    v_xor_b32 v{T}, 64, v{V_DW}
    v_xor_b32 v{T+1}, 128, v{V_DW}
    v_xor_b32 v{T+2}, 192, v{V_DW}
    """)
    for i in range(1, 8):
        src = [V_DW, T, T+1, T+2][(i & 1) + 2*(i >> 2)]
        p.e(f"v_add_u32 v{V_DW+i}, {2*i*8192 - (i&3)*1024}, v{src}")

def q_setup_rd(p):
    T = V_T
    p.e(f"""
    v_and_b32 v{T}, 15, v0
    s_mul_i32 s{S_T0}, s{S_P}, 80
    v_add_u32 v{T}, s{S_T0}, v{T}
    v_lshlrev_b32 v{T}, 7, v{T}
    v_lshrrev_b32 v{T+1}, 4, v0
    v_bfe_u32 v{T+2}, v0, 1, 3
    v_xor_b32 v{T+2}, v{T+1}, v{T+2}
    v_lshl_add_u32 v{V_XL}, v{T+2}, 4, v{T}
    v_xor_b32 v{V_XL+1}, 64, v{V_XL}
    v_bfe_u32 v{T}, v0, 2, 2
    v_lshl_add_u32 v{T+2}, v{T+1}, 3, v{T}
    v_lshlrev_b32 v{T+2}, 9, v{T+2}
    v_and_b32 v{T+3}, 3, v0
    v_lshl_add_u32 v{T+2}, v{T+3}, 3, v{T+2}
    s_lshl_b32 s{S_T0}, s{S_HH}, 8
    v_add_u32 v{T+2}, s{S_T0}, v{T+2}
    v_and_b32 v{T+1}, 1, v{T+1}
    v_lshl_add_u32 v{T}, v{T+1}, 2, v{T}
    v_lshl_add_u32 v{V_WL}, v{T}, 5, v{T+2}
    """)
    for dt in range(1, 8): p.e(f"v_xor_b32 v{V_WL+dt}, {dt*32}, v{V_WL}")

class Rec:
    def __init__(self): self.l = []
    def e(self, text):
        for x in text.strip().split("\n"):
            x = x.strip()
            if x: self.l.append(re.sub(r"\bs6([123])\b", lambda m: f"s{95 + int(m.group(1))}", x))
    def items(self):
        o, i = [], 0
        while i < len(self.l):
            j = i + 1
            while j < len(self.l) and self.l[j].startswith(("s_addc", "s_cselect")): j += 1
            o.append(self.l[i:j] if j > i + 1 else self.l[i]); i = j
        return o

def q_period(p, cfg, buf, dma, vm, rotate=True, name="q period", post=None, extra=None):
    sh = cfg.q_sh
    m = []
    for dt in range(sh, 8): m += q_group(dt, buf)
    for dt in range(sh): m += q_group(dt, buf ^ 1)
    s = Sched(m)
    s.put(-1, [f"s_waitcnt vmcnt({vm}) lgkmcnt(0)", "s_barrier"])
    if dma: s.add(win(flat([dma]), 0, 78) + win(post or [], 79, 79))
    seq = win(un([q_rd_a(dt) for dt in range(sh)]), 0, 9)
    last = 10*(8 - sh)
    for dt in range(sh, 8):
        lo = 10*(dt - sh + 1)
        seq += win(q_rd_a(dt), lo, lo + (9 if (dt < 7 or sh > 1) else 5))
    s.add(seq).add(win(q_rd_b(buf ^ 1), 0, last - 10))
    if extra: s.add(win(extra, 0, 79), reach=2)
    if rotate:
        upd = lambda r, l, sr: f"v_add_u32 v{r}, s{sr}, v{l}"
        t = win([f"s_add_u32 s{S_XN}, s{S_XW}, s{S_XR}", f"s_add_u32 s{S_WN}, s{S_WW}, s{S_WR}"] +
                flat([slot_rotate(S_XR, XSLOT) + slot_rotate(S_WR, WSLOT)]), last - 12, last - 1)
        t += win([upd(V_XC+i, V_XL+i, S_XR) for i in range(2)] + [upd(V_WC+i, V_WL+i, S_WR) for i in range(7)], last, 78)
        t += win([upd(V_WC+7, V_WL+7, S_WR)], 77 if sh == 1 else last + 10, 79)
        s.add(t, reach=2)
    run(p, cfg, name, s)

def phase1a(p, cfg):
    p.e(f"""
    s_mov_b32 s{S_STEP}, 0
    {'s_lshl1_add_u32' if cfg.rot1 == 8 or cfg.phi2 else 's_add_u32'} s{S_PHI}, s{S_HP}, s{S_B}
    s_mul_i32 s{S_XW}, s{S_W}, {5*KB}
    s_lshl_b32 s{S_WW}, s{S_W}, 13
    """)
    slot = lambda s: q_rot(cfg) + [f"s_add_u32 s{S_XD}, s{S_XW}, {XSLOT[s]}", f"s_add_u32 s{S_WD}, s{S_WW}, {WSLOT[s]}"] + q_dma(cfg)
    emit(p, slot(0))
    q_setup_rd(p)
    for i in range(2): p.e(f"v_add_u32 v{V_XC+i}, {XSLOT[0]}, v{V_XL+i}")
    for i in range(8): p.e(f"v_add_u32 v{V_WC+i}, {WSLOT[0]}, v{V_WL+i}")
    for i in range(80): p.e(f"v_mov_b64 {vr(ACC+2*i,2)}, 0")
    late = [Rec(), Rec(), Rec()] if cfg.late_setup else [p, p, p]
    phase1_srds2(late[0], cfg)
    attn_setup(late[0], late[1], cfg)
    emit(late[1], p2_srds())
    if cfg.late_setup: flag_clear(late[1], cfg); flag_cleared(late[2], cfg)
    emit(p, slot(1))
    p.e("s_waitcnt vmcnt(13)\ns_barrier")
    stamp(p, cfg, "q_first")
    rb = q_rd_b(0)
    rd = rb[:2] + q_rd_a(0) + rb[2:]
    for dt in range(1, 8): rd += q_rd_a(dt)
    emit(p, rd)
    s2 = slot(2)
    k = next(i for i, x in enumerate(s2) if x.startswith("buffer_"))
    emit(p, s2[:k])
    if not cfg.late_setup: flag_clear(p, cfg)
    if cfg.tlb:
        p.e(f"v_lshlrev_b32 v{V_T}, {cfg.tlb}, v0\ns_cmp_eq_u32 s{S_W}, 1\ns_cselect_b32 s{S_T0}, 0, 0x40000000")
        for r in (SRD_K, SRD_V, SRD_WO, SRD_OR, SRD_OUT): p.e(f"buffer_load_dword v{V_T+1}, v{V_T}, {srd(r)}, s{S_T0} offen")
        p.e(f"s_mul_i32 s{S_T1}, s2, {40*KB}\ns_add_u32 s{S_T0}, s{S_T0}, s{S_T1}\nbuffer_load_dword v{V_T+1}, off, {srd(SRD_EX)}, s{S_T0}")
    p.e(f"s_mov_b32 s{S_XR}, {XSLOT[1]}\ns_mov_b32 s{S_WR}, {WSLOT[1]}")
    s = Sched(un([q_group(dt, 0) for dt in range(cfg.q_sh)]))
    s.add(win(s2[k:] + [f"s_add_u32 s{S_XD}, s{S_XW}, {XSLOT[0]}", f"s_add_u32 s{S_WD}, s{S_WW}, {WSLOT[0]}"], 0, 10*cfg.q_sh - 1), reach=0)
    s.add(win([f"v_add_u32 v{V_XC+i}, s{S_XR}, v{V_XL+i}" for i in range(2)] +
              [f"v_add_u32 v{V_WC+i}, s{S_WR}, v{V_WL+i}" for i in range(8)], 0, 10*cfg.q_sh - 1))
    run(p, cfg, "q group 0", s)
    dyn = lambda: q_rot(cfg) + q_dma(cfg)
    post = [f"s_mov_b32 s{S_XD}, s{S_XN}", f"s_mov_b32 s{S_WD}, s{S_WN}"]
    p.begin_loop()
    p.e("Lq_loop:")
    q_period(p, cfg, 0, dyn(), 13, post=post)
    q_period(p, cfg, 1, dyn(), 13, post=post)
    p.e(f"s_cmp_lt_u32 s{S_STEP}, 15\ns_cbranch_scc1 Lq_loop")
    p.end_loop()
    stamp(p, cfg, "q_loop_end")
    if not cfg.late_setup: flag_cleared(p, cfg)
    ex = [r.items() for r in late] if cfg.late_setup else [None]*3
    q_period(p, cfg, 0, dyn(), 13, extra=ex[0], name="q p12")
    q_period(p, cfg, 1, kv_static(cfg, 0), 13, name="q p13", extra=ex[1])
    q_period(p, cfg, 0, kv_static(cfg, 1) + kv_static(cfg, 2), 8, rotate=False, name="q p14")
    global FINAL_EXTRA
    FINAL_EXTRA = ex[2]
    stamp(p, cfg, "q_p14")

V_DK, V_DV = 1, 5
V_KC, V_VC = 7, 11
V_MG = 19
V_OA, V_OL = 24, 25
V_QW, V_QR = 252, 253
V_S = [192, 200]
V_S0 = [228, 236, 244, 200, 192]
V_NM = 208
A_Q, A_K, A_V, A_ONE, A_L = 104, [184, 0], [216, 32], 248, 64

def attn_setup(p, p2, cfg):
    T = V_T
    p.e(f"""
    v_lshrrev_b32 v{T}, 4, v0
    s_lshl_b32 s{S_T0}, s{S_P}, 12
    s_lshl_b32 s{S_T1}, s{S_HH}, 17
    s_add_u32 s{S_T0}, s{S_T0}, s{S_T1}
    v_lshl_add_u32 v{T+1}, v{T}, 8, s{S_T0}
    v_and_b32 v{T+2}, 15, v0
    v_xor_b32 v{T+3}, v{T+2}, v{T}
    v_lshl_add_u32 v{V_DK}, v{T+3}, 4, v{T+1}
    v_xor_b32 v{V_DK+1}, 64, v{V_DK}
    v_xor_b32 v{V_DK+2}, 128, v{V_DK}
    v_xor_b32 v{V_DK+3}, 192, v{V_DK}
    v_lshlrev_b32 v{T+4}, 1, v{T}
    v_xor_b32 v{T+4}, v{T+4}, v{T+2}
    v_lshl_add_u32 v{V_DV}, v{T+4}, 4, v{T+1}
    v_xor_b32 v{V_DV+1}, 128, v{V_DV}
    s_lshl_b32 s{S_KW}, s{S_W}, 12
    s_lshl_b32 s{S_T0}, s{S_HH}, 13
    s_add_u32 s{S_T0}, s{S_T0}, {RING[0]}
    v_lshl_add_u32 v{T+1}, v{T+2}, 8, s{S_T0}
    v_lshl_add_u32 v{V_KC}, v{T+3}, 4, v{T+1}
    v_xor_b32 v{V_KC+1}, 64, v{V_KC}
    v_xor_b32 v{V_KC+2}, 128, v{V_KC}
    v_xor_b32 v{V_KC+3}, 192, v{V_KC}
    v_lshrrev_b32 v{T+1}, 2, v0
    v_and_b32 v{T+3}, 7, v{T+1}
    s_add_u32 s{S_T0}, s{S_T0}, {16*KB}
    v_lshl_add_u32 v{T+1}, v{T+1}, 8, s{S_T0}
    v_and_b32 v{T+4}, 3, v0
    v_lshl_add_u32 v{T+1}, v{T+4}, 3, v{T+1}
    v_lshl_add_u32 v{V_VC}, v{T+3}, 5, v{T+1}
    """)
    for dt in range(1, 8): p.e(f"v_xor_b32 v{V_VC+dt}, {dt*32}, v{V_VC}")
    p = p2
    p.e(f"""
    s_lshl_b32 s{S_T0}, s{S_W}, 12
    s_add_u32 s{S_T0}, s{S_T0}, {QSCR}
    v_lshl_add_u32 v{V_QR}, v0, 4, s{S_T0}
    v_lshrrev_b32 v{T+1}, 5, v0
    v_lshl_add_u32 v{T+1}, v{T+1}, 4, v{T+2}
    v_lshl_add_u32 v{T+1}, v{T+1}, 4, s{S_T0}
    v_and_b32 v{T}, 1, v{T}
    v_lshl_add_u32 v{V_QW}, v{T}, 3, v{T+1}
    s_lshl_b32 s{S_T0}, s{S_HH}, 12
    s_mul_i32 s{S_T1}, s{S_P}, {5*131072}
    s_add_u32 s{S_T0}, s{S_T0}, s{S_T1}
    v_lshl_add_u32 v{V_OA}, v0, 4, s{S_T0}
    s_mul_i32 s{S_T0}, s{S_HH}, {40*KB}
    s_mul_i32 s{S_T1}, s{S_P}, {10*KB}
    s_add_u32 s{S_T0}, s{S_T0}, s{S_T1}
    s_add_u32 s{S_T0}, s{S_T0}, {P2X}
    v_lshl_add_u32 v{V_OL}, v0, 4, s{S_T0}
    v_mov_b32 v{T}, 0x3f803f80
    """)
    for t in range(5): p.e(f"v_mov_b32 v{V_MG+t}, 0xff800000")
    for i in range(4): p.e(f"v_accvgpr_write_b32 a{A_ONE+i}, v{T}")

def kv_dma(cfg, pre, m0k, m0v, thr=None):
    w = (lambda x: x) if thr is None else (lambda x: [f"s_waitcnt vmcnt({thr})", x])
    g = pre + [m0k]
    g += [w(f"buffer_load_dwordx4 v{V_DK+i}, {srd(SRD_K)}, s{S_SOK} offen offset:{i*1024}{cfg.f_kv} lds") for i in range(4)]
    g += [m0v]
    g += [w(f"buffer_load_dwordx4 v{V_DV+(i&1)}, {srd(SRD_V)}, s{S_SOK} offen offset:{i*1024}{cfg.f_kv} lds") for i in range(4)]
    return g
def kv_static(cfg, j):
    pre = [f"s_add_u32 s{S_SOK}, s{S_KPH}, {j*8192}", f"s_and_b32 s{S_SOK}, s{S_SOK}, 0x1ffff"] if cfg.kv_phase else [f"s_mov_b32 s{S_SOK}, {j*8192}"]
    return kv_dma(cfg, pre, f"s_add_u32 m0, s{S_KW}, {RING[j % len(RING)]}", f"s_add_u32 m0, s{S_KW}, {RING[j % len(RING)] + 16*KB}", cfg.thr_q)
def kv_dyn(cfg, odd):
    g = kv_dma(cfg, [[f"s_bitcmp0_b32 s{S_SKIP}, s{S_PER}", f"s_cselect_b32 s{S_SOK}, s{S_NB}, 0x40000000", f"s_cselect_b32 s{S_T0}, s{S_KD}, {192*KB}"],
                     f"s_cselect_b32 s{S_T1}, 0x2000, 0", f"s_add_u32 s{S_T0}, s{S_T0}, s{S_KW}"],
               f"s_mov_b32 m0, s{S_T0}", f"s_add_u32 m0, s{S_T0}, {16*KB}", cfg.thr)
    g[0] = g[0] + [g.pop(1)]
    if cfg.kv_phase: g.append(f"s_and_b32 s{S_NB}, s{S_NB}, 0x1ffff")
    if cfg.kv_phase: g.insert(len(g) - 1, f"s_add_u32 s{S_NB}, s{S_NB}, s{S_T1}")
    return g + [*([] if cfg.kv_phase else [f"s_add_u32 s{S_NB}, s{S_NB}, s{S_T1}"]), f"s_lshl2_add_u32 s{S_KD}, s{S_T1}, s{S_KD}",
                *([f"s_and_b32 s{S_KD}, s{S_KD}, 0x1ffff"] if cfg.ring == 4 else [[f"s_cmp_eq_u32 s{S_KD}, {160*KB}", f"s_cselect_b32 s{S_KD}, 0, s{S_KD}"]]),
                f"s_add_u32 s{S_PER}, s{S_PER}, 1"]
def skip_mask(cfg):
    m, n, j = cfg.skip, cfg.ring, 0
    while n < 16:
        if not (m >> j) & 1: n += 1
        j += 1
    return (m | (0xffffffff << j)) & 0xffffffff
_lab = [0]
def guarded(test, body):
    _lab[0] += 1
    return test + [f"s_cbranch_scc0 Lg{_lab[0]}"] + body + [f"Lg{_lab[0]}:"]
def kv_pf(cfg):
    if not cfg.pf_mask: return []
    return [guarded([f"s_bitcmp1_b32 s{S_PFM}, s{S_STEP}"],
                    [f"buffer_load_dword v25, v{V_PF}, {srd(SRD_PF)}, s{S_PFO} offen{cfg.pf_fl}", f"s_addk_i32 s{S_PFO}, 0x2000"])]
def pf_setup(p, cfg):
    if not cfg.pf_mask: return
    p.e(f"""
    s_cmp_lt_u32 s{S_W}, 2
    s_cselect_b32 s{SRD_PF}, s{SRD_K}, s{SRD_V}
    s_cselect_b32 s{SRD_PF+1}, s{SRD_K+1}, s{SRD_V+1}
    s_mov_b32 s{SRD_PF+2}, 262144
    s_mov_b32 s{SRD_PF+3}, 0x20000
    s_lshl_b32 s{S_T0}, s{S_P}, 17
    v_lshl_add_u32 v{V_PF}, v0, 7, s{S_T0}
    s_mov_b32 s{S_PFO}, 0
    s_lshr_b32 s{S_T0}, s2, 3
    s_and_b32 s{S_T0}, s{S_T0}, {cfg.pf_spread-1}
    s_lshl_b32 s{S_PFM}, {cfg.pf_mask << 4}, s{S_T0}
    """)
def wo_pf(cfg, end=False):
    T = V_T
    body = [f"v_lshrrev_b32 v{T}, 1, v0", f"v_and_b32 v{T+1}, 1, v0", f"v_lshlrev_b32 v{T}, 11, v{T}",
                          f"v_lshl_add_u32 v{T}, v{T+1}, 7, v{T}", f"s_lshl2_add_u32 s{S_T0}, s{S_B}, s{S_W}", f"s_lshl_b32 s{S_T0}, s{S_T0}, 17",
                          f"buffer_load_dword v{V_QR}, v{T}, {srd(SRD_WO)}, s{S_T0} offen", f"s_add_u32 s{S_T0}, s{S_T0}, 65536",
                          f"buffer_load_dword v{V_QR}, v{T}, {srd(SRD_WO)}, s{S_T0} offen"]
    if end: return un(body)
    return guarded([f"s_cmp_eq_u32 s{S_PER}, {cfg.wo_pf + 1}"], un(body))
def k_reads(b):
    return [f"ds_read_b128 {ar(A_K[b]+16*kt+4*kk,4)}, v{V_KC+kk} offset:{b*32*KB*(len(RING) == 4) + kt*4096}" for kt in range(2) for kk in range(4)]
def v_reads(b):
    return [f"ds_read_b64_tr_b16 {ar(A_V[b]+4*dt+2*j,2)}, v{V_VC+dt} offset:{b*32*KB*(len(RING) == 4) + j*4096}" for dt in range(8) for j in range(2)]
def addr_flip(op="v_xor_b32", c="0x10000"):
    return [f"{op} v{r}, {c}, v{r}" for r in range(V_KC, V_KC + 12)]
def ring5_step():
    return [[f"s_cmp_eq_u32 s{S_KR}, {128*KB}", f"s_cselect_b32 s{S_DLT}, s{S_XD}, s{S_WD}"], f"s_add_u32 s{S_KR}, s{S_KR}, s{S_DLT}"]
def addr_add(): return [f"v_add_u32 v{r}, s{S_DLT}, v{r}" for r in range(V_KC, V_KC + 12)]
def qk(qt, s, b, c0=False):
    m = []
    for kt in range(2):
        d = vr(s + 4*kt, 4)
        for kk in range(4):
            c = ('0' if c0 else vr(V_NM + 4*qt, 4)) if kk == 0 else d
            m.append(f"{M16} {d}, {ar(A_K[b]+16*kt+4*kk,4)}, {ar(A_Q+16*qt+4*kk,4)}, {c}")
    return m
def pv(qt, s, b, c0=False):
    m = []
    for dt in range(8):
        d = vr(acc(qt, dt), 4)
        m.append(f"{M16} {d}, {ar(A_V[b]+4*dt,4)}, {vr(s,4)}, {'0' if c0 else d}")
    d = ar(A_L + 4*qt, 4)
    m.append(f"{M16} {d}, {ar(A_ONE,4)}, {vr(s,4)}, {'0' if c0 else d}")
    return m
def sm_ops(s):
    E = lambda i: f"v_exp_f32 v{s+i}, v{s+i}"
    C = lambda j: f"v_cvt_pk_bf16_f32 v{s+j}, v{s+2*j}, v{s+2*j+1}"
    return [(0, E(0)), (2, E(1)), (4, E(2)), (5, C(0)), (6, E(3)), (8, E(4)), (9, C(1)), (10, E(5)),
            (12, E(6)), (13, C(2)), (14, E(7)), (15, C(3))]

def block(p, cfg, b, last=False, extra=None):
    sb = lambda qt: V_S[(b + qt) & 1]
    m = qk(0, sb(0), b) + pv(4, V_S[b ^ 1], b ^ 1)
    for qt in range(1, 5): m += qk(qt, sb(qt), b) + pv(qt-1, sb(qt-1), b)
    s = Sched(m)
    s.put(-1, [f"s_waitcnt vmcnt({0 if last else cfg.a_vm}) lgkmcnt(0)", "s_barrier"])
    for g, op in sm_ops(V_S[b ^ 1]):
        if g >= 9: s.put(g - 9, op)
    tail = []
    for qt in range(5):
        for g, op in sm_ops(sb(qt)):
            gg = 17*qt + 8 + g
            if gg < 85: s.put(gg, op)
            else: tail.append(op)
    if not last:
        s.add(win(flat([kv_dyn(cfg, b)]), 0, cfg.a_hi), reach=4)
        if b == 1 and cfg.wo_pf: s.put(84, wo_pf(cfg))
        s.add(win(k_reads(b ^ 1), 0, 40)).add(win(v_reads(b ^ 1), 17, 72))
        if cfg.ring == 5:
            fl = addr_add()
            s.add(win(flat([ring5_step()]), 30, 42) + win(fl[:4], 44, 70) + win(fl[4:], 74, 84), reach=4)
        elif b == 0:
            fl = addr_flip()
            s.add(win(fl[:4], 44, 70) + win(fl[4:], 74, 84), reach=4)
    for e in extra or []: s.add(e, reach=4)
    run(p, cfg, f"block parity {b}{' last' if last else ''}", s)
    return tail

def conv(qt, kk):
    a = acc(qt, 2*kk)
    o = []
    for h in range(2):
        o += [f"v_mul_f32 v{a+4*h+j}, s{S_SCALE}, v{a+4*h+j}" for j in range(4)]
        o += [f"v_cvt_pk_bf16_f32 v{a+4*h+j}, v{a+4*h+2*j}, v{a+4*h+2*j+1}" for j in range(2)]
        o += [f"ds_write_b64 v{V_QW}, {vr(a+4*h,2)} offset:{(qt&3)*1024 + h*512}"]
    return o + [f"ds_read_b128 {ar(A_Q+16*qt+4*kk,4)}, v{V_QR} offset:{(qt&3)*1024}"]

def rowmax(qt, s):
    a, b = (V_T, V_T+1) if qt & 1 else (V_T+2, V_T+3)
    nm = V_NM + 4*qt
    o = [f"v_max3_f32 v{a}, v{s}, v{s+1}, v{s+2}", f"v_max3_f32 v{b}, v{s+3}, v{s+4}, v{s+5}",
         f"v_max3_f32 v{a}, v{a}, v{s+6}, v{s+7}", f"v_max3_f32 v{a}, v{a}, v{b}, v{V_MG+qt}",
         f"v_mov_b32 v{b}, v{a}", f"v_permlane16_swap_b32 v{a}, v{b}", f"v_max_f32 v{a}, v{a}, v{b}",
         f"v_mov_b32 v{b}, v{a}", f"v_permlane32_swap_b32 v{a}, v{b}", f"v_max_f32 v{a}, v{a}, v{b}"]
    o += [f"v_sub_f32 v{s+i}, v{s+i}, v{a}" for i in range(8)]
    o += [f"v_sub_f32 v{nm+i}, 0, v{a}" for i in range(4)]
    return o

def block0(p, cfg, with_conv):
    R5 = cfg.ring == 5
    p.e(f"s_mov_b32 s{S_NB}, {cfg.ring*8192}\ns_mov_b32 s{S_KD}, {RING[0]}\ns_mov_b32 s{S_PER}, 0\ns_mov_b32 s{S_SKIP}, {hex(skip_mask(cfg))}")
    if cfg.kv_phase: p.e(f"s_add_u32 s{S_NB}, s{S_NB}, s{S_KPH}\ns_and_b32 s{S_NB}, s{S_NB}, 0x1ffff")
    if R5: p.e(f"s_mov_b32 s{S_KR}, {RING[1]}\ns_mov_b32 s{S_WD}, {32*KB}\ns_mov_b32 s{S_XD}, {(-128*KB) & 0xffffffff}\ns_mov_b32 s{S_DLT}, {32*KB}")
    p.e(f"s_waitcnt vmcnt({20 if R5 else 16}) lgkmcnt(0)\ns_barrier")
    if R5: emit(p, addr_add())
    m = []
    for qt in range(5): m += qk(qt, V_S0[qt], 0, c0=True)
    for qt in range(4): m += pv(qt, V_S0[qt], 0, c0=True)
    s = Sched(m)
    if with_conv:
        for qt in range(1, 5): s.add(win(conv(qt, 3), max(0, 8*qt - 12), 8*qt - 3), reach=1)
    if R5:
        s.put(36, ["s_barrier"])
        k4 = kv_static(cfg, 4)
        s.add(win([k4[0]] + k4[6:], 37, 48) + win(flat([kv_dyn(cfg, 0)]), 49, 75), reach=1)
    else:
        s.add(win(flat([kv_dyn(cfg, 0)]), 0, cfg.b0_hi))
    lo, hi = [10, 29, 41, 51, 61], [37, 46, 55, 64, 75]
    sm = []
    for qt in range(5):
        sm += win(rowmax(qt, V_S0[qt]) + [op for g, op in sm_ops(V_S0[qt]) if qt < 4 or g < 9], lo[qt], hi[qt])
    s.add(sm, reach=1)
    s.add(win(k_reads(1) + v_reads(1), 0, 60))
    s.add(win([f"v_mov_b64 {vr(acc(4,0)+2*i,2)}, 0" for i in range(16)] + [f"v_accvgpr_write_b32 a{A_L+16+i}, 0" for i in range(4)], 33, 75))
    s.add(win(flat([ring5_step()]) + addr_add() if R5 else addr_flip(), 62, 75))
    run(p, cfg, "block 0", s)
    emit(p, p2_setup_wo() + p2_setup_rest())

def phase1b(p, cfg):
    sh = cfg.q_sh
    m = []
    for dt in range(sh, 8): m += q_group(dt, 1)
    n = len(m)
    s = Sched(m)
    s.put(-1, ["s_waitcnt lgkmcnt(0)", "s_barrier"])
    s.put(n - 40, ["s_waitcnt vmcnt(16)", "s_barrier"])
    s.add(win(flat([kv_static(cfg, 3) + (kv_static(cfg, 4)[:6] if cfg.ring == 5 else [])]), 0, min(cfg.ql_hi, n - 1)))
    cv = []
    for kk in range(3):
        lo = 20*kk + 22 - 10*sh
        cv += win(un([conv(qt, kk) for qt in range(5)]), lo, min(n - 1, lo + 22))
    s.add(cv, reach=1)
    s.add(win(k_reads(0) + v_reads(0), n - 39, n - 4))
    if FINAL_EXTRA: s.add(win(FINAL_EXTRA, n - 30, n - 1))
    run(p, cfg, "q last", s)
    emit(p, conv(0, 3))
    stamp(p, cfg, "q_end")
    block0(p, cfg, True)
    stamp(p, cfg, "blk0_end")
    p.begin_loop()
    p.e("Lattn_loop:")
    block(p, cfg, 1)
    block(p, cfg, 0)
    stamp_dyn(p, cfg, [f"a{2*i+2}" for i in range(7)], [f"s_lshr_b32 s{S_T2}, s{S_PER}, 1", f"s_sub_u32 s{S_T2}, s{S_T2}, 1"])
    p.e(f"s_cmp_lt_u32 s{S_PER}, 15\ns_cbranch_scc1 Lattn_loop")
    p.end_loop()

def o_tile(cfg, qt, packed=False):
    r = V_T + 2*(qt & 1)
    o = [f"v_accvgpr_read_b32 v{r}, a{A_L+4*qt}", f"s_mov_b32 s{S_SOK}, {qt*131072}",
         f"v_max_u32 v{V_T+5}, v{V_T+5}, v{r}", f"v_rcp_f32 v{r}, v{r}"]
    for kk in range(4):
        a = acc(qt, 2*kk)
        if packed: o += [f"v_pk_mul_f32 {vr(a+2*j,2)}, {vr(a+2*j,2)}, {vr(r,2)} op_sel_hi:[1,0]" for j in range(4)]
        else: o += [f"v_mul_f32 v{a+j}, v{r}, v{a+j}" for j in range(8)]
        o += [f"v_cvt_pk_bf16_f32 v{a+j}, v{a+2*j}, v{a+2*j+1}" for j in range(4)]
        o += [f"buffer_store_dwordx4 {vr(a,4)}, v{V_OA}, {srd(SRD_OW)}, s{S_SOK} offen offset:{kk*1024}{cfg.o_store}"]
        o += [f"ds_write_b128 v{V_OL}, {vr(a,4)} offset:{(kk>>1)*20*KB + qt*2048 + (kk&1)*1024}"]
    return o

def sentinel(vf, va, so):
    o = srd_ex() + [f"v_mov_b32 v{vf+i}, -1" for i in range(4)] + \
        [f"s_lshl2_add_u32 s{S_T2}, s2, s{S_W}", f"s_mul_i32 s{S_T2}, s{S_T2}, {10*KB}", f"v_lshl_add_u32 v{va}, v0, 4, s{S_T2}"]
    for i in range(10):
        if i % 4 == 0: o.append(f"s_mov_b32 s{so}, {i*1024}")
        o.append(f"buffer_store_dwordx4 {vr(vf,4)}, v{va}, {srd(SRD_EX)}, s{so} offen offset:{(i&3)*1024} sc1")
    return o
def sent_init():
    return [f"v_mov_b32 v{V2_F+i}, -1" for i in range(4)] + \
           [f"s_lshl2_add_u32 s{S_T2}, s2, s{S_W}", f"s_mul_i32 s{S_T2}, s{S_T2}, {10*KB}", f"v_lshl_add_u32 v{V2_EI}, v0, 4, s{S_T2}",
            f"s_mov_b32 s{S_SO2}, 0"]
def sent_step():
    return [[f"s_cmp_lt_u32 s{S_SO2}, {10*KB}", f"s_cselect_b32 s{S_T2}, s{S_SO2}, 0x40000000"],
            f"buffer_store_dwordx4 {vr(V2_F,4)}, v{V2_EI}, {srd(SRD_EX)}, s{S_T2} offen sc1", f"s_addk_i32 s{S_SO2}, 0x400"]
def attn_end(p, cfg):
    T = V_T
    side = [f"s_lshl3_add_u32 s{S_T0}, s{S_BLK}, s{S_B}", f"s_lshl_b32 s{S_INI}, s{S_T0}, 4",
            f"buffer_load_dwordx4 {vr(V2_G,4)}, off, {srd(SRD_DBG)}, s{S_INI} sc1"]
    for i in range(4): side += [f"s_add_u32 s{S_SOW}, s{S_OWN}, {i}", f"s_lshl_b32 s{S_SOW}, s{S_SOW}, 17"] + p2_dma_w(cfg, i)
    if cfg.wo_pf_at == 'p15': side += wo_pf(cfg, True)
    ex = [win(flat([side]), 0, 36),
          win([f"v_mov_b32 v{T+5}, 0"], 0, 20) + win(o_tile(cfg, 0), 38, 62) + win(o_tile(cfg, 1), 62, 84)]
    tail = block(p, cfg, 1, last=True, extra=ex)
    t2 = o_tile(cfg, 2, True)
    k = 0
    for op in tail:
        emit(p, [op] + t2[k:k+4]); k += 4
    emit(p, t2[k:])
    s = Sched(pv(4, V_S[1], 1))
    s.add(win(o_tile(cfg, 3), 0, 8), reach=0)
    run(p, cfg, "last pv", s)
    stamp(p, cfg, "attn_end")
    emit(p, o_tile(cfg, 4, True))
    npf = 2 if cfg.wo_pf_at == 'stores' else 0
    if npf: emit(p, wo_pf(cfg, True))
    lim = f32bits(L_LIMIT if not cfg.force_fallback else 1.0)
    p.e(f"""
    v_cmp_le_u32 vcc, {hex(lim)}, v{T+5}
    s_lshl_b32 s{S_T1}, s{S_W}, 2
    s_add_u32 s{S_T1}, s{S_T1}, {VOTE}
    v_mov_b32 v{T+1}, s{S_T1}
    s_cmp_lg_u64 vcc, 0
    s_cselect_b32 s{S_T0}, 1, 0
    v_mov_b32 v{T}, s{S_T0}
    ds_write_b32 v{T+1}, v{T}
    v_mov_b32 v{T+1}, {VOTE}
    s_waitcnt vmcnt({20 + npf}) lgkmcnt(0)
    s_barrier
    ds_read_b128 v[28:31], v{T+1}
    v_or3_b32 v28, v28, v29, v30
    v_or_b32 v28, v28, v31
    v_readfirstlane_b32 s{S_T0}, v28
    s_andn2_b32 s{S_T0}, s{S_T0}, s{S_FB}
    s_cmp_lg_u32 s{S_T0}, 0
    s_cbranch_scc1 Lfallback
    """)
    stamp(p, cfg, "o_stored")

def fallback(cfg):
    p = Prog()
    p.e(f"Lfallback:\ns_mov_b32 s{S_FB}, 1\ns_mov_b32 s{S_SOK}, 0")
    emit(p, addr_flip("v_and_b32", "0xffff" if cfg.ring == 4 else "0x7fff"))
    p.begin_loop()
    p.e(f"Lfb_loop:\ns_barrier\ns_mov_b32 m0, s{S_KW}\ns_nop 0")
    for i in range(4): p.e(f"buffer_load_dwordx4 v{V_DK+i}, {srd(SRD_K)}, s{S_SOK} offen offset:{i*1024} lds")
    p.e("s_waitcnt vmcnt(0)\ns_barrier")
    emit(p, k_reads(0))
    for qt in range(5): emit(p, qk(qt, V_S0[qt], 0, c0=True))
    for qt in range(5):
        s_ = V_S0[qt]
        emit(p, [f"v_max3_f32 v{V_MG+qt}, v{V_MG+qt}, v{s_+2*i}, v{s_+2*i+1}" for i in range(4)])
    p.e(f"s_addk_i32 s{S_SOK}, 0x2000\ns_cmp_lt_u32 s{S_SOK}, 131072\ns_cbranch_scc1 Lfb_loop")
    p.end_loop()
    p.e("s_barrier")
    for j in range(4): emit(p, kv_static(cfg, j))
    if cfg.ring == 5: emit(p, kv_static(cfg, 4)[:6])
    emit(p, addr_flip("v_or_b32", hex(RING[0])))
    p.e(f"s_waitcnt vmcnt({28 if cfg.ring == 5 else 24})\ns_barrier")
    emit(p, k_reads(0) + v_reads(0))
    v = cfg.verbose; cfg.verbose = False
    block0(p, cfg, False)
    cfg.verbose = v
    p.e("s_branch Lattn_loop")
    return p

def phase1_srds(p, cfg):
    p.e(f"s_mul_i32 s{S_T0}, s{S_B}, 327680")
    mk_srd(p, SRD_X, 64, 65, f"s{S_T0}", 327680)
    p.e(f"s_lshl_b32 s{S_T0}, s{S_HP}, 9\ns_sub_u32 s{S_T1}, {1024*8192}, s{S_T0}")
    mk_srd(p, SRD_WQ, 70, 71, f"s{S_T0}", f"s{S_T1}")
def phase1_srds2(p, cfg):
    p.e(f"s_lshl4_add_u32 s{S_T0}, s{S_B}, s{S_HP}\ns_lshl_b32 s{S_T0}, s{S_T0}, 18")
    mk_srd(p, SRD_K, 66, 67, f"s{S_T0}", 262144)
    mk_srd(p, SRD_V, 68, 69, f"s{S_T0}", 262144)
    p.e(f"""
    s_mul_i32 s{S_T0}, s{S_BLK}, {WS_O_BLK}
    s_mul_i32 s{S_T1}, s{S_B}, {10*131072}
    s_add_u32 s{S_T0}, s{S_T0}, s{S_T1}
    s_lshl_b32 s{S_T1}, s{S_HP}, 13
    s_add_u32 s{S_T0}, s{S_T0}, s{S_T1}
    s_sub_u32 s{S_T1}, {10*131072}, s{S_T1}
    """)
    mk_srd(p, SRD_OW, 88, 89, f"s{S_T0}", f"s{S_T1}")
    p.e(f"s_mov_b32 s{S_SCALE}, {hex(f32bits(QSCALE))}\ns_mov_b32 s{S_FB}, 0")
    if cfg.kv_phase: p.e(f"s_lshr_b32 s{S_KPH}, s2, {cfg.kv_phase[0]}\ns_mul_i32 s{S_KPH}, s{S_KPH}, {cfg.kv_phase[1]}\ns_and_b32 s{S_KPH}, s{S_KPH}, 15\ns_lshl_b32 s{S_KPH}, s{S_KPH}, 13")
def own_line(v, mask=48):
    return [f"s_lshl_b32 s{S_T0}, s2, 7", f"v_lshl_add_u32 v{v}, v0, 2, s{S_T0}", f"v_and_b32 v{v+1}, {mask}, v0",
            f"v_lshl_add_u32 v{v}, v{v+1}, 24, v{v}"]
def flag_clear(p, cfg):
    T = V_T
    emit(p, own_line(T, 32) + [f"s_cmp_eq_u32 s{S_W}, 0", f"s_cselect_b32 s{S_W0}, 0, 0x40000000", f"v_mov_b32 v{T+2}, 0",
                           f"buffer_store_dword v{T+2}, v{T}, {srd(SRD_FL)}, s{S_W0} offen sc1"])
def flag_cleared(p, cfg):
    T = V_T
    p.e(f"""
    s_lshl3_add_u32 s{S_T0}, s{S_BLK}, s{S_B}
    s_lshl4_add_u32 s{S_T0}, s{S_T0}, s{S_HP}
    v_lshl_add_u32 v{T}, v0, 24, s{S_T0}
    v_mov_b32 v{T+1}, 1
    buffer_store_byte v{T+1}, v{T}, {srd(SRD_DBG)}, s{S_W0} offen sc1
    """)
def srd_ex(): return [f"s_mov_b32 s{S_T2}, {WS_EX}"] + srd_lines(SRD_EX, 88, 89, f"s{S_T2}", 256*40*KB)

V2_DW, V2_DX, V2_WC, V2_XC = 228, 232, 237, 241
V2_EI, V2_EO, V2_OUT, V2_PUB, V2_OWN, V2_F, V2_G = 243, 244, 245, 246, 247, 248, 248
S_INI = 7
S_KPH = 75
S_XN, S_WN = 82, 100
P2_FA = 0
P2_FB = [32, 72]
def acc2(mt, v): return ACC + 16*mt + 4*v

def p2_srd_wo():
    return [f"s_lshl_b32 s{S_T0}, s{S_KH}, 22", f"s_lshl_b32 s{S_T1}, s{S_NT}, 8", f"s_add_u32 s{S_T0}, s{S_T0}, s{S_T1}",
            f"s_sub_u32 s{S_T1}, {2048*2048}, s{S_T1}"] + srd_lines(SRD_WO, 72, 73, f"s{S_T0}", f"s{S_T1}")
def p2_setup_wo():
    a, b = V2_DW, V2_DW + 1
    o = [f"v_lshrrev_b32 v{a}, 4, v0", f"v_lshlrev_b32 v{b}, 1, v{a}", f"v_xor_b32 v{b}, v{b}, v0", f"v_and_b32 v{b}, 15, v{b}",
         f"s_lshl_b32 s{S_T0}, s{S_W}, 15", f"v_lshl_add_u32 v{a}, v{a}, 11, s{S_T0}", f"v_lshl_add_u32 v{a}, v{b}, 4, v{a}",
         f"v_xor_b32 v{b}, 128, v{a}", f"v_add_u32 v{a+2}, {2*7168}, v{a}", f"v_add_u32 v{a+3}, {3*7168}, v{b}", f"v_add_u32 v{b}, 7168, v{b}"]
    return o
def p2_srds():
    o = p2_srd_wo() + srd_ex()
    o += [f"s_mul_i32 s{S_T0}, s{S_BLK}, {WS_O_BLK}", f"s_mul_i32 s{S_T1}, s{S_B}, {10*131072}", f"s_add_u32 s{S_T0}, s{S_T0}, s{S_T1}",
          f"s_lshl_b32 s{S_T1}, s{S_KH}, 16", f"s_add_u32 s{S_T0}, s{S_T0}, s{S_T1}", f"s_sub_u32 s{S_T1}, {10*131072}, s{S_T1}"]
    o += srd_lines(SRD_OR, 88, 89, f"s{S_T0}", f"s{S_T1}")
    o += [f"s_mul_i32 s{S_T0}, s{S_B}, {160*4096}", f"s_lshl_b32 s{S_T1}, s{S_BLK}, 11", f"s_lshl_b32 s{S_T2}, s{S_NT}, 8",
          f"s_add_u32 s{S_T1}, s{S_T1}, s{S_T2}", f"s_add_u32 s{S_T0}, s{S_T0}, s{S_T1}", f"s_sub_u32 s{S_T1}, {160*4096}, s{S_T1}"]
    o += srd_lines(SRD_OUT, 84, 85, f"s{S_T0}", f"s{S_T1}")
    o += [f"s_mov_b32 s{S_T1}, {WS_FL}"] + srd_lines(SRD_FL, 88, 89, f"s{S_T1}", 256*128) + srd_lines(SRD_DBG, 86, 87, None, 256)
    o += [f"s_lshl_b32 s{S_T0}, s{S_KH}, 3", f"s_lshl_b32 s{S_NEED}, 0xff, s{S_T0}", f"s_bitset0_b32 s{S_NEED}, s{S_HP}",
          f"s_lshl_b32 s{S_OWN}, s{S_NT}, 2"]
    return o
def p2_setup_rest():
    T = V_T
    o = []
    o += [f"v_lshlrev_b32 v{T}, 4, v0", f"s_mul_i32 s{S_T0}, s{S_W}, 5", f"s_mul_i32 s{S_XW}, s{S_W}, {5*KB}"]
    for i in range(5):
        o += [f"s_add_u32 s{S_T1}, s{S_T0}, {i}", f"s_lshr_b32 s{S_T2}, s{S_T1}, 1", f"s_lshl_b32 s{S_T2}, s{S_T2}, 7",
              f"s_and_b32 s{S_T1}, s{S_T1}, 1", f"s_add_u32 s{S_T1}, s{S_T1}, s{S_T2}", f"s_sub_u32 s{S_T1}, s{S_T1}, {i&3}",
              f"s_lshl_b32 s{S_T1}, s{S_T1}, 10", f"v_add_u32 v{V2_DX+i}, s{S_T1}, v{T}"]
    o += [f"s_mul_i32 s{S_T0}, s{S_HH}, {10*KB}", f"s_add_u32 s{S_T0}, s{S_T0}, {P2X}", f"v_add_u32 v{V2_XC}, s{S_T0}, v{T}",
          f"v_add_u32 v{V2_XC+1}, {40*KB}, v{V2_XC}",
          f"s_xor_b32 s{S_T0}, s2, 2", f"s_lshl2_add_u32 s{S_T0}, s{S_T0}, s{S_W}", f"s_mul_i32 s{S_T0}, s{S_T0}, {10*KB}",
          f"v_add_u32 v{V2_EO}, s{S_T0}, v{T}",
          f"s_lshl2_add_u32 s{S_T0}, s2, s{S_W}", f"s_mul_i32 s{S_T0}, s{S_T0}, {10*KB}", f"v_add_u32 v{V2_EI}, s{S_T0}, v{T}",
          f"v_lshrrev_b32 v{T}, 2, v0", f"v_and_b32 v{T+1}, 7, v{T}", f"v_lshlrev_b32 v{T}, 8, v{T}", f"v_and_b32 v{T+2}, 3, v0",
          f"v_lshl_add_u32 v{T}, v{T+2}, 3, v{T}", f"s_lshl_b32 s{S_T0}, s{S_P}, 2", f"s_lshl1_add_u32 s{S_T0}, s{S_KH}, s{S_T0}",
          f"v_xor_b32 v{T+1}, s{S_T0}, v{T+1}", f"v_lshl_add_u32 v{V2_WC}, v{T+1}, 5, v{T}"]
    o += [f"v_xor_b32 v{V2_WC+v}, {32*v}, v{V2_WC}" for v in range(1, 4)]
    o += [f"v_and_b32 v{T}, 15, v0", f"s_mul_i32 s{S_T0}, s{S_HH}, {80*4096}", f"s_lshl_b32 s{S_T1}, s{S_P}, 7",
          f"s_add_u32 s{S_T0}, s{S_T0}, s{S_T1}", f"s_lshl_b32 s{S_T1}, s{S_KH}, 6", f"s_add_u32 s{S_T0}, s{S_T0}, s{S_T1}",
          f"v_lshl_add_u32 v{T}, v{T}, 12, s{S_T0}", f"v_bfe_u32 v{T+1}, v0, 4, 1", f"v_lshl_add_u32 v{T}, v{T+1}, 5, v{T}",
          f"v_lshrrev_b32 v{T+1}, 5, v0", f"v_lshl_add_u32 v{V2_OUT}, v{T+1}, 4, v{T}"]
    o += [f"v_and_b32 v{T}, 3, v0", f"v_bfe_u32 v{T+1}, v0, 2, 2", f"v_lshl_add_u32 v{T}, v{T}, 3, v{T+1}",
          f"s_lshl_b32 s{S_T0}, s{S_B}, 5", f"s_lshl2_add_u32 s{S_T0}, s{S_BLK}, s{S_T0}", f"s_lshl_b32 s{S_T0}, s{S_T0}, 5",
          f"s_add_u32 s{S_T0}, s{S_T0}, s{S_HP}", f"s_lshl_b32 s{S_T0}, s{S_T0}, 2", f"v_lshl_add_u32 v{T}, v{T}, 7, s{S_T0}",
          f"v_and_b32 v{T+1}, 48, v0", f"v_lshl_add_u32 v{V2_PUB}, v{T+1}, 24, v{T}"]
    o += own_line(T) + [f"v_mov_b32 v{V2_OWN}, v{T}"]
    return o

def p2_rot(cfg, pos=None, adv=True):
    l = [f"s_sub_u32 s{S_T0}, s{S_STEP}, 4" if pos is None else f"s_mov_b32 s{S_T0}, {pos - 4}", f"s_lshr_b32 s{S_T1}, s{S_T0}, 2",
         [f"s_cmp_ge_u32 s{S_T1}, s{S_NT}", f"s_addc_u32 s{S_T1}, s{S_T1}, 0"]]
    if cfg.rot2 > 1: l += [f"s_add_u32 s{S_T0}, s{S_T0}, s{S_NT}"]
    l += [f"s_and_b32 s{S_T0}, s{S_T0}, 3", f"s_lshl2_add_u32 s{S_T0}, s{S_T1}, s{S_T0}",
          f"s_lshl_b32 s{S_SOX}, s{S_T0}, 11", f"s_lshl_b32 s{S_SOW}, s{S_T0}, 17"]
    return l + ([f"s_add_u32 s{S_STEP}, s{S_STEP}, 1"] if pos is None else [])
def p2_dma_w(cfg, sl): return dma_run(V2_DW, 4, SRD_WO, S_SOW, lambda k: f"s_add_u32 m0, s{S_KW}, {P2W + sl*16*KB}", cfg.f_wo)
def p2_dma_x(cfg, sl): return dma_run(V2_DX, 5, SRD_OR, S_SOX, lambda k: f"s_add_u32 m0, s{S_XW}, {P2X + sl*20*KB + k*4096}", cfg.o_load)
def p2_rd_a(v, sl, fa=P2_FA):
    return [f"ds_read_b64_tr_b16 {ar(fa+8*v+4*kk+2*j,2)}, v{V2_WC+v} offset:{P2W + sl*16*KB + (kk*32+j*16)*256}" for kk in range(2) for j in range(2)]
def p2_rd_b(fb, sl):
    return [f"ds_read_b128 {ar(fb+8*mt+4*kk,4)}, v{V2_XC+(sl>>1)} offset:{(sl&1)*20*KB + mt*2048 + kk*1024}" for mt in range(5) for kk in range(2)]
def p2_group(v, fb, fa=P2_FA, c0=False):
    m = []
    for mt in range(5):
        d = vr(acc2(mt, v), 4)
        m += [f"{M16} {d}, {ar(fa+8*v+4*kk,4)}, {ar(fb+8*mt+4*kk,4)}, {'0' if c0 and kk == 0 else d}" for kk in range(2)]
    return m
def p2_period(p, cfg, st, seq0, head, c0=False, name="p2 period"):
    sh = cfg.p_sh
    fb, fn, nx = P2_FB[st & 1], P2_FB[~st & 1], (st + 1) & 3
    s = Sched(un([p2_group(v, fb, c0=c0) for v in range(sh, 4)] + [p2_group(v, fn) for v in range(sh)]))
    s.put(-1, head)
    if sh == 1:
        s.add(seq0, reach=2)
        seq = []
        for v in range(4): seq += win(p2_rd_a(v, nx), 10*v, 10*v + (9 if v < 3 else 5))
        s.add(seq, reach=2).add(win(p2_rd_b(fn, nx), 0, 24), reach=2)
    else:
        rb = p2_rd_b(fn, nx)
        s.add(win(rb[:2] + p2_rd_a(0, nx) + rb[2:], 0, 16) + win(p2_rd_a(1, nx) + p2_rd_a(2, nx), 17, 26) + win(p2_rd_a(3, nx), 27, 32), reach=1)
        s.add(seq0, reach=2)
    run(p, cfg, name, s)

def phase2(p, cfg):
    T = V_T
    bar = lambda vm: [f"s_waitcnt vmcnt({vm}) lgkmcnt(0)", "s_barrier"]
    rb = p2_rd_b(P2_FB[0], 0)
    emit(p, rb[:2] + p2_rd_a(0, 0) + rb[2:] + p2_rd_a(1, 0) + p2_rd_a(2, 0) + p2_rd_a(3, 0))
    ini = [f"v_and_b32 v{T}, v{V2_G}, v{V2_G+1}", f"v_and_b32 v{T+1}, v{V2_G+2}, v{V2_G+3}", f"v_and_b32 v{T}, v{T}, v{T+1}",
           f"v_readfirstlane_b32 s{S_T2}, v{T}"]
    s = Sched(un([p2_group(v, P2_FB[0], c0=True) for v in range(cfg.p_sh)]))
    s.add(win(ini + [f"v_mov_b32 v{T+1}, 1"], 0, 9))
    run(p, cfg, "p2 group 0", s)
    p2_period(p, cfg, 0, win(flat([p2_rot(cfg, 4)]), 0, 6) + win(p2_dma_w(cfg, 0), 7, 30), ["s_waitcnt lgkmcnt(0)", "s_barrier"], c0=True, name="p2 p0")
    head = bar(6 if cfg.wo_pf_at == 'stores' else 4) + [f"s_cmp_lg_u32 s{S_T2}, 0x01010101", "s_cbranch_scc1 Lini_wait", "Lini_ok:",
                     f"buffer_load_dword v{T+2}, v{V2_OWN}, {srd(SRD_FL)}, 0 offen sc1",
                     f"buffer_store_dword v{T+1}, v{V2_PUB}, {srd(SRD_FL)}, s{S_W0} offen sc1"]
    p2_period(p, cfg, 1, win(flat([p2_rot(cfg, 5)]), 0, 6) + win(p2_dma_w(cfg, 1), 7, 30), head, name="p2 p1")
    stamp(p, cfg, "p2_p1")
    head = ["s_waitcnt vmcnt(5)", f"v_cmp_eq_u32 vcc, 1, v{T+2}", "s_waitcnt lgkmcnt(0)", "s_barrier", "s_nop 1",
            f"s_andn2_b32 s{S_T0}, s{S_NEED}, vcc_lo", "s_cbranch_scc1 Lgrp_wait", "Lgrp_ok:"]
    d = p2_rot(cfg, 4) + p2_dma_x(cfg, 0) + p2_rot(cfg, 5) + p2_dma_x(cfg, 1) + p2_rot(cfg, 6) + p2_dma_w(cfg, 2) + p2_dma_x(cfg, 2)
    p2_period(p, cfg, 2, win(flat([d]), 0, 39), head, name="p2 p2")
    stamp(p, cfg, "p2_p2")
    dyn = lambda st: win(flat([p2_rot(cfg)]), 0, 3) + win(p2_dma_w(cfg, st & 3) + p2_dma_x(cfg, st & 3), 3, 39)
    p.e(f"s_mov_b32 s{S_STEP}, 7")
    p2_period(p, cfg, 3, dyn(3), bar(14), name="p2 p3")
    p.begin_loop()
    p.e("Lp2_loop:")
    for st in range(4): p2_period(p, cfg, st, dyn(st), bar(18))
    p.e(f"s_cmp_lt_u32 s{S_STEP}, 32\ns_cbranch_scc1 Lp2_loop")
    p.end_loop()
    stamp(p, cfg, "p2_loop_end")
    FA = {28: P2_FA, 29: 112, 30: 144, 31: 176}
    FB = {28: P2_FB[0], 29: P2_FB[1], 30: 208, 31: P2_FB[0]}
    o = 10 * (2 - cfg.p_sh)
    order = [(28, 1)][:2 - cfg.p_sh] + [(28, 2), (28, 3), (29, 2), (29, 3), (30, 2), (30, 3), (31, 2), (31, 3), (29, 0), (29, 1), (30, 0), (30, 1), (31, 0), (31, 1)]
    m = []
    for st, v in order: m += p2_group(v, FB[st], FA[st])
    s = Sched(m)
    s.put(-1, bar(18)); s.put(o + 15, ["s_waitcnt vmcnt(9)", "s_barrier"]); s.put(o + 35, ["s_waitcnt vmcnt(0)", "s_barrier"])
    R = 112
    NX = 5 if cfg.ex_bf16 else 10
    def send(v):
        o_ = []
        for mt in range(5):
            if cfg.ex_bf16:
                a = acc2(mt, v)
                o_ += [f"v_cvt_pk_bf16_f32 v{acc2(mt, 2) + 2*(v-2) + j}, v{a+2*j}, v{a+2*j+1}" for j in range(2)]
                if v == 3:
                    o_ += [f"s_mov_b32 s{S_SOX}, {(mt >> 2)*4096}",
                           f"buffer_store_dwordx4 {vr(acc2(mt, 2),4)}, v{V2_EO}, {srd(SRD_EX)}, s{S_SOX} offen offset:{(mt&3)*1024} sc1"]
                continue
            i = 2*mt + v - 2
            o_ += [f"s_mov_b32 s{S_SOX}, {(i >> 2)*4096}",
                   f"buffer_store_dwordx4 {vr(acc2(mt, v),4)}, v{V2_EO}, {srd(SRD_EX)}, s{S_SOX} offen offset:{(i&3)*1024} sc1"]
        return o_
    loads = []
    for i in range(NX):
        if i % 4 == 0: loads.append(f"s_mov_b32 s{S_SOX}, {i*1024}")
        loads.append(f"buffer_load_dwordx4 {vr(R+4*i,4)}, v{V2_EI}, {srd(SRD_EX)}, s{S_SOX} offen offset:{(i&3)*1024} sc1")
    pre = [f"s_lshl_b32 s{S_T0}, s{S_W}, 2", f"s_add_u32 s{S_T0}, s{S_T0}, 64", f"s_lshl_b32 s{S_T1}, s2, 7",
           f"s_add_u32 s{S_SOK}, s{S_T0}, s{S_T1}", f"s_xor_b32 s{S_T1}, s{S_SOK}, 256", f"v_lshl_add_u32 v{T}, v0, 24, s{S_T1}",
           f"v_mov_b32 v{T+1}, 1", f"s_mov_b32 s{S_SPIN}, {SPIN_MAX}"]
    poll = f"buffer_load_dword v{T+2}, off, {srd(SRD_FL)}, s{S_SOK} sc1"
    s.add(win(pre, o + 53, o + 69) + win(send(2), o + 70, o + 79) + win(send(3), o + 80, o + 89) +
          win([["s_waitcnt vmcnt(0)", f"buffer_store_dword v{T+1}, v{T}, {srd(SRD_FL)}, 0 offen sc1"]], o + cfg.ex_lo, o + cfg.ex_lo) +
          win([poll], o + 138, o + 138), reach=0)
    blk = lambda st: p2_rd_b(FB[st], st & 3)[:2] + p2_rd_a(2, st & 3, FA[st]) + p2_rd_b(FB[st], st & 3)[2:] + p2_rd_a(3, st & 3, FA[st])
    rd = win(blk(29), 0, o + 15) + win(blk(30), o + 16, o + 35) + win(blk(31), o + 36, o + 54)
    for st in (29, 30, 31): rd += win(p2_rd_a(0, st & 3, FA[st]) + p2_rd_a(1, st & 3, FA[st]), o + 55 + 12*(st - 29), o + 66 + 12*(st - 29))
    s.add(rd, reach=1)
    run(p, cfg, "p2 last", s)
    stamp(p, cfg, "p2_mfma_end")
    p.e(f"""
    s_branch Lex_test
    Lex_poll:
    {poll}
    Lex_test:
    s_sub_u32 s{S_SPIN}, s{S_SPIN}, 1
    s_cbranch_scc1 Lex_done
    s_waitcnt vmcnt(0)
    v_readfirstlane_b32 s{S_T1}, v{T+2}
    s_nop 1
    s_cmp_lg_u32 s{S_T1}, 1
    s_cbranch_scc1 Lex_poll
    Lex_done:
    """)
    emit(p, loads)
    stamp(p, cfg, "p2_exch")
    for mt in range(5):
        a = acc2(mt, 0)
        if cfg.ex_bf16:
            o = ["s_waitcnt vmcnt(4)"]
            for j in range(4):
                o += [f"v_lshlrev_b32 v{T}, 16, v{R+4*mt+j}", f"v_and_b32 v{T+1}, 0xffff0000, v{R+4*mt+j}",
                      f"v_pk_add_f32 {vr(a+2*j,2)}, {vr(a+2*j,2)}, {vr(T,2)}"]
        else:
            o = [f"s_waitcnt vmcnt({8 - mt})"]
            o += [f"v_pk_add_f32 {vr(a+2*j,2)}, {vr(a+2*j,2)}, {vr(R+8*mt+2*j,2)}" for j in range(4)]
        o += [f"v_cvt_pk_bf16_f32 v{a+j}, v{a+2*j}, v{a+2*j+1}" for j in range(4)]
        o += [f"s_mov_b32 s{S_T0}, {mt*65536}", f"v_permlane16_swap_b32 v{a}, v{a+2}", f"v_permlane16_swap_b32 v{a+1}, v{a+3}",
              f"buffer_store_dwordx4 {vr(a,4)}, v{V2_OUT}, {srd(SRD_OUT)}, s{S_T0} offen"]
        emit(p, o)
    stamp(p, cfg, "p2_end")

def waits(cfg):
    T = V_T
    p = Prog()
    sl = f"s_sleep {cfg.poll_sleep}" if cfg.poll_sleep else ""
    p.e(f"""
    Lini_wait:
    s_mov_b32 s{S_SPIN}, {SPIN_MAX}
    Lini_poll:
    buffer_load_dwordx4 {vr(V2_G,4)}, off, {srd(SRD_DBG)}, s{S_INI} sc1
    s_waitcnt vmcnt(0)
    v_and_b32 v{T}, v{V2_G}, v{V2_G+1}
    v_and_b32 v{T+2}, v{V2_G+2}, v{V2_G+3}
    v_and_b32 v{T}, v{T}, v{T+2}
    s_sub_u32 s{S_SPIN}, s{S_SPIN}, 1
    s_cbranch_scc1 Lini_ok
    v_readfirstlane_b32 s{S_T2}, v{T}
    s_nop 1
    s_cmp_lg_u32 s{S_T2}, 0x01010101
    s_cbranch_scc1 Lini_poll
    s_branch Lini_ok
    Lgrp_wait:
    """)
    if cfg.wo_pf_poll: emit(p, wo_pf(cfg, True))
    p.e(f"""
    s_mov_b32 s{S_SPIN}, {SPIN_MAX}
    Lgrp_poll:
    buffer_load_dword v{T+2}, v{V2_OWN}, {srd(SRD_FL)}, 0 offen sc1
    s_sub_u32 s{S_SPIN}, s{S_SPIN}, 1
    s_cbranch_scc1 Lgrp_ok
    s_waitcnt vmcnt(0)
    v_cmp_eq_u32 vcc, 1, v{T+2}
    s_nop 4
    s_andn2_b32 s{S_T0}, s{S_NEED}, vcc_lo
    s_cbranch_scc0 Lgrp_ok
    {sl}
    s_branch Lgrp_poll
    """)
    return p

def kernel1(cfg):
    p = Prog()
    entry(p, cfg, "Lexit1")
    stamp(p, cfg, "start")
    q_setup_dma(p)
    p.e("s_waitcnt lgkmcnt(0)")
    select_ptrs(p)
    phase1_srds(p, cfg)
    phase1a(p, cfg)
    phase1b(p, cfg)
    attn_end(p, cfg)
    if cfg.fused: phase2(p, cfg)
    stamp_flush(p, cfg, 0)
    p.e("Lexit1:\ns_endpgm")
    return [p, waits(cfg), fallback(cfg)]

def kernel2(cfg):
    p = Prog()
    entry(p, cfg, "Lexit2")
    stamp(p, cfg, "k2_start")
    p.e(f"s_lshl_b32 s{S_KW}, s{S_W}, 12\ns_waitcnt lgkmcnt(0)")
    select_ptrs(p)
    phase2(p, cfg)
    stamp_flush(p, cfg, 1)
    p.e("Lexit2:\ns_endpgm")
    return [p]

def descriptor(name):
    return f""".section .rodata,"a"
.p2align 6
.amdhsa_kernel {name}
  .amdhsa_next_free_vgpr 512
  .amdhsa_next_free_sgpr 102
  .amdhsa_accum_offset 256
  .amdhsa_group_segment_fixed_size 0
  .amdhsa_kernarg_size 104
  .amdhsa_user_sgpr_count 2
  .amdhsa_user_sgpr_kernarg_segment_ptr 1
  .amdhsa_system_sgpr_workgroup_id_x 1
.end_amdhsa_kernel
"""
def build(cfg):
    global WSLOT, RING, QSCR, VOTE
    if cfg.ring == 5:
        WSLOT[:] = [0, 32*KB, 64*KB]; RING[:] = [32*KB, 64*KB, 96*KB, 128*KB, 0]; QSCR = 16*KB
    ref = open(f"cdna_kernels/{NAME}.s.ref").read().split("\n")
    head = [l for l in ref if l.startswith(";") and "@launch" not in l and not l.startswith("; Override") and not l.startswith("; grid=")]
    ks = [(NAME + "_kernel", kernel1(cfg))] if cfg.fused else [("attn_kernel", kernel1(cfg)), ("oproj_kernel", kernel2(cfg))]
    out = "\n".join(head) + "\n"
    for n, _ in ks:
        out += f"; @launch {'' if cfg.fused else 'kernel=' + n + ' '}grid=(256,1,1) block=(256,1,1) lds={LDS_BYTES}\n"
    if cfg.stamps: out += "; stamps: " + ",".join(STAMPS) + "\n"
    out += '.amdgcn_target "amdgcn-amd-amdhsa--gfx950"\n'
    def text(n, ps):
        o = ""
        for p in ps:
            p.insert_lgkm_waits()
            pad = p.hazards()
            if cfg.verbose: print(f"{n}: {sum(len(i) for _, i in p.segs)} lines, nop pad {pad}", file=sys.stderr)
            o += p.text()
        return o
    for n, ps in ks:
        out += f".text\n.globl {n}\n.p2align 8\n.type {n},@function\n{n}:\n"
        if cfg.alt:
            import copy, re
            c2 = copy.copy(cfg)
            for k, v in cfg.alt.items(): setattr(c2, k, v)
            STAMPS.clear()
            t2 = re.sub(r"\b(L[a-z]\w*)", r"\1_b", text(n, kernel1(c2)))
            out += "    s_bitcmp1_b32 s2, 2\n    s_cbranch_scc1 Lalt\n" + text(n, ps) + ".p2align 6\nLalt:\n" + t2
        else:
            out += text(n, ps)
    for n, _ in ks: out += descriptor(n)
    return out

if __name__ == "__main__":
    cfg = Cfg()
    outp = f"cdna_kernels/{NAME}.s"
    for a in sys.argv[1:]:
        if a.startswith("-o="): outp = a[3:]; continue
        k, v = a.split("=", 1)
        assert hasattr(cfg, k), k
        setattr(cfg, k, eval(v))
    open(outp, "w").write(build(cfg))
```
